```python
import torch

def _softmax(x, axis=-1):
    return torch.softmax(x, dim=axis)
def _gelu(x):
    return torch.nn.functional.gelu(x, approximate="tanh")
def _silu(x):
    return torch.nn.functional.silu(x)
def _sigmoid(x):
    return torch.sigmoid(x)
def _layernorm(x, axis=-1, eps=1e-5):
    m = x.mean(dim=axis, keepdim=True)
    v = x.var(dim=axis, keepdim=True, unbiased=False)
    return (x - m) / torch.sqrt(v + eps)
def _scatter_add(tgt, idx, src, axis=0):
    return tgt.clone().index_add_(axis, idx, src)
def _segment_sum(src, seg, n):
    out = torch.zeros((n,) + src.shape[1:], dtype=src.dtype)
    return out.index_add_(0, seg, src)
def _pad(x, pw):
    flat = tuple(v for pair in reversed(pw) for v in pair)
    return torch.nn.functional.pad(x, flat)

kernel_name = 'concat_heads__ssm_conv_s4d__ssm_conv_h3__prompt'

def setup_inputs():

    _w = (lambda a: (lambda t: t.to(torch.bfloat16) if t.is_floating_point() else t)(torch.as_tensor(a)))
    def _A_setup():
        Bsz, L, D, N = 1, 2048, 640, 128
        return {
            "u": _w((lambda *s: torch.randn(*s, dtype=torch.bfloat16) * 0.05)(Bsz, L, D)),
            "log_A_real": _w((lambda *s: torch.randn(*s, dtype=torch.bfloat16) * 3.2)(D, N) * 0.5),
            "A_imag": _w((lambda *s: torch.randn(*s, dtype=torch.bfloat16) * 0.05)(D, N) * 3.14),
            "C_real": _w((lambda *s: torch.randn(*s, dtype=torch.bfloat16) * 0.1)(D, N) / N ** 0.5),
            "C_imag": _w((lambda *s: torch.randn(*s, dtype=torch.bfloat16) * 0.1)(D, N) / N ** 0.5),
            "log_dt": _w((lambda *s: torch.randn(*s, dtype=torch.bfloat16) * 0.05)(D) * 0.5 - 4.0),
            "D_skip": _w((lambda *s: torch.randn(*s, dtype=torch.bfloat16) * 0.05)(D)),
        }
    _A_in = _A_setup()

    def _B_setup():
        B, S, D = 1, 2048, 640
        ks = 4
        return {
            "q": _w((lambda *s: torch.randn(*s, dtype=torch.bfloat16) * 0.05)(B, S, D)),
            "k": _w((lambda *s: torch.randn(*s, dtype=torch.bfloat16) * 0.4)(B, S, D)),
            "v": _w((lambda *s: torch.randn(*s, dtype=torch.bfloat16) * 0.2)(B, S, D)),
            "shift_k": _w((lambda *s: torch.randn(*s, dtype=torch.bfloat16) * 0.4)(D, ks) * 0.5),
            "ssm_k": _w((lambda *s: torch.randn(*s, dtype=torch.bfloat16) * 0.4)(D, S) * (1.0 / S ** 0.5)),
            "ssm_D": _w((lambda *s: torch.randn(*s, dtype=torch.bfloat16) * 0.2)(D)),
        }
    _B_in = _B_setup()

    return {
        "A_u": _A_in["u"],
        "A_log_A_real": _A_in["log_A_real"],
        "A_A_imag": _A_in["A_imag"],
        "A_C_real": _A_in["C_real"],
        "A_C_imag": _A_in["C_imag"],
        "A_log_dt": _A_in["log_dt"],
        "A_D_skip": _A_in["D_skip"],
        "B_q": _B_in["q"],
        "B_k": _B_in["k"],
        "B_v": _B_in["v"],
        "B_shift_k": _B_in["shift_k"],
        "B_ssm_k": _B_in["ssm_k"],
        "B_ssm_D": _B_in["ssm_D"],
    }

def reference(A_u, A_log_A_real, A_A_imag, A_C_real, A_C_imag, A_log_dt, A_D_skip, B_q, B_k, B_v, B_shift_k, B_ssm_k, B_ssm_D):
    def _A_ref(u, log_A_real, A_imag, C_real, C_imag, log_dt, D_skip):
        L = u.shape[1]
        dt = torch.exp(log_dt)
        A = -torch.exp(log_A_real) + 1j * A_imag
        C = (C_real + 1j * C_imag) * dt[:, None]
        pos = (lambda x, dt: x.to(dt))(torch.arange(L), log_dt.dtype)
        P = torch.exp((A * dt[:, None])[:, :, None] * pos[None, None, :])
        K = 2.0 * torch.einsum("dn,dnl->dl", C, P).real
        L2 = 2 * L
        u_t = (lambda x, *d: x.permute(*d))(u, 0, 2, 1)
        Kf = (lambda x, *a, **k: torch.fft.rfft(x.float(), *a, **k))(K, L2)
        Uf = (lambda x, *a, **k: torch.fft.rfft(x.float(), *a, **k))(u_t, L2)
        y = (lambda x, *a, **k: torch.fft.irfft(x, *a, **k).to(torch.bfloat16))(Uf * Kf[None, :, :], L2)[:, :, :L]
        y = (lambda x, *d: x.permute(*d))(y, 0, 2, 1)
        return y + u * D_skip[None, None, :]

    def _B_ref(q, k, v, shift_k, ssm_k, ssm_D):
        B, S, D = q.shape
        ks = shift_k.shape[-1]
        k_pad = _pad(k, ((0, 0), (ks - 1, 0), (0, 0)))
        k_shift = torch.zeros_like(k)
        for t in range(ks):
            k_shift = k_shift + k_pad[:, t:t + S, :] * shift_k[:, ks - 1 - t][None, None, :]
        kv = k_shift * v
        L = 2 * S
        kv_pad = _pad(kv, ((0, 0), (0, S), (0, 0)))
        kf_pad = _pad(ssm_k, ((0, 0), (0, S)))
        kv_f = (lambda x, axes=(-2,-1): torch.fft.rfft2(x.float(), dim=axes))(kv_pad[:, None, :, :], axes=(1, 2))
        kf_f = (lambda x, axes=(-2,-1): torch.fft.rfft2(x.float(), dim=axes))(kf_pad[:, None, :], axes=(1, 2))
        kf_f = (lambda x, *d: x.permute(*d))(kf_f, 1, 2, 0)
        y_f = kv_f * kf_f[None, :, :, :]
        y = (lambda x, s, axes=(-2,-1): torch.fft.irfft2(x, s=s, dim=axes).to(torch.bfloat16))(y_f, (1, L), axes=(1, 2))[:, 0, :S, :]
        y = y + kv * ssm_D[None, None, :]
        return q * y

    a = _A_ref(A_u, A_log_A_real, A_A_imag, A_C_real, A_C_imag, A_log_dt, A_D_skip)
    b = _B_ref(B_q, B_k, B_v, B_shift_k, B_ssm_k, B_ssm_D)
    return torch.concatenate([a, b], axis=-1)
```

```python
import re

REG_RE = re.compile(r'^(-|abs\()?\|?([vsa])(\d+)\)?\|?$')
RNG_RE = re.compile(r'^(-)?([vsa])\[(\d+):(\d+)\]$')

def parse_regs(tok):
    tok = tok.strip()
    if tok in ('vcc', 'vcc_lo', 'vcc_hi'):
        return [('s', 'vcc')]
    if tok in ('exec', 'exec_lo', 'exec_hi'):
        return [('s', 'exec')]
    if tok == 'm0':
        return [('s', 'm0')]
    m = REG_RE.match(tok)
    if m:
        return [(m.group(2), int(m.group(3)))]
    m = RNG_RE.match(tok)
    if m:
        return [(m.group(2), i) for i in range(int(m.group(3)), int(m.group(4)) + 1)]
    return []

TRANS = ('v_exp_f32', 'v_log_f32', 'v_rcp_f32', 'v_rsq_f32', 'v_sqrt_f32', 'v_sin_f32', 'v_cos_f32', 'v_rcp_iflag_f32')

class Ins:
    def __init__(self, text):
        self.text = text
        t = text.split(';')[0].strip()
        self.is_label = t.endswith(':')
        self.is_dir = t.startswith('.')
        self.empty = (t == '')
        self.op = ''
        self.w = set(); self.r = set()
        self.kind = None
        if self.is_label or self.is_dir or self.empty:
            return
        parts = t.split(None, 1)
        self.op = parts[0]
        rest = parts[1] if len(parts) > 1 else ''
        ops = []; depth = 0; cur = ''
        for ch in rest:
            if ch == '[': depth += 1
            if ch == ']': depth -= 1
            if ch == ',' and depth == 0:
                ops.append(cur.strip()); cur = ''
            else:
                cur += ch
        if cur.strip(): ops.append(cur.strip())
        clean = []
        for o in ops:
            clean.append(o.split()[0] if o else o)
        self.ops = clean
        op = self.op
        R = lambda i: set(parse_regs(clean[i])) if i < len(clean) else set()
        allr = lambda s: set().union(*[R(i) for i in range(s, len(clean))]) if len(clean) > s else set()
        if op.startswith('v_mfma'):
            self.kind = 'mfma'; self.w = R(0); self.r = allr(1)
            self.A = R(1); self.B = R(2); self.C = R(3)
            self.passes = 8 if '32x32' in op else 4
        elif op.startswith('v_cmp'):
            self.kind = 'valu'; self.w = R(0); self.r = allr(1)
        elif op in ('v_readfirstlane_b32', 'v_readlane_b32'):
            self.kind = 'valu'; self.w = R(0); self.r = allr(1)
        elif op.startswith('v_'):
            self.kind = 'valu'; self.w = R(0); self.r = allr(1)
            if op.startswith(('v_add_co', 'v_sub_co', 'v_addc_co', 'v_subb_co')):
                self.w |= R(1); self.r = allr(2)
            if op.startswith('v_cndmask') and len(clean) == 3:
                self.r |= {('s', 'vcc')}
            if op.startswith(('v_fmac', 'v_dot2c', 'v_mac')) or 'd16' in op:
                self.r |= R(0)
            if op.startswith('v_permlane'):
                self.w |= R(1); self.r |= R(0)
            if 'dpp' in op or 'row_' in t or 'wave_' in t:
                self.dpp = True; self.r |= R(0)
        elif op.startswith(('buffer_load', 'global_load')):
            self.kind = 'vmem'; self.w = R(0); self.r = allr(1)
            if 'd16' in op: self.r |= R(0)
        elif op.startswith(('buffer_store', 'global_store', 'buffer_atomic', 'global_atomic')):
            self.kind = 'vmem'; self.r = allr(0)
            self.store_data = R(0) if op.startswith('buffer') else R(1)
            self.wide = ('x3' in op or 'x4' in op)
        elif op.startswith('ds_read') or op.startswith('ds_bpermute') or op.startswith('ds_swizzle'):
            self.kind = 'ds'; self.w = R(0); self.r = allr(1)
            if 'd16' in op: self.r |= R(0)
        elif op.startswith('ds_'):
            self.kind = 'ds'; self.r = allr(0)
        elif op.startswith('s_'):
            self.kind = 'salu'
            if op.startswith(('s_cmp', 's_bitcmp', 's_waitcnt', 's_nop', 's_barrier', 's_branch', 's_cbranch', 's_endpgm', 's_sleep', 's_setprio')):
                self.r = allr(0)
            else:
                self.w = R(0); self.r = allr(1)
                if 'saveexec' in op: self.w |= {('s', 'exec')}; self.r |= {('s', 'exec')}
        else:
            raise ValueError('unknown op ' + text)

    def states(self):
        if self.is_label or self.is_dir or self.empty: return 0
        if self.op == 's_nop': return int(self.ops[0], 0) + 1
        return 1

def need(p, c):
    n = 0
    if p.kind == 'valu':
        vw = {x for x in p.w if x[0] == 'v'}
        sw = {x for x in p.w if x[0] == 's'}
        if c.kind == 'mfma' and vw & c.r: n = max(n, 2)
        if c.kind == 'valu':
            if p.op in TRANS and vw & c.r: n = max(n, 1)
            if sw & c.r:
                n = max(n, 4 if c.op in ('v_readlane_b32', 'v_writelane_b32') else 2)
            if c.op in ('v_readfirstlane_b32', 'v_readlane_b32') and vw & c.r: n = max(n, 1)
            if (getattr(c, 'dpp', False) or c.op.startswith('v_permlane')) and vw & c.r: n = max(n, 2)
        if c.kind == 'vmem' and sw & c.r: n = max(n, 5)
        if c.kind == 'ds' and sw & c.r: n = max(n, 5)
        if c.kind == 'salu' and sw & c.r: n = max(n, 2)
    if p.kind == 'salu' and ('s','m0') in p.w and c.kind == 'ds' and 'addtid' in c.op: n = max(n, 1)
    if p.kind == 'mfma':
        raw = {4: 8, 8: 12}[p.passes]
        if c.kind == 'mfma':
            if p.w & (c.A | c.B): n = max(n, raw)
            if p.w & c.C and not (c.C == p.w and c.passes == p.passes): n = max(n, {4: 6, 8: 10}[p.passes])
            if p.w & c.w and not (c.w == p.w): n = max(n, raw)
        elif c.kind in ('valu', 'vmem', 'ds'):
            if p.w & (c.r | c.w): n = max(n, raw)
            if c.kind == 'valu' and p.C & c.w: n = max(n, {4: 3, 8: 7}[p.passes])
    if p.kind == 'vmem' and getattr(p, 'store_data', None) and getattr(p, 'wide', False):
        if c.kind in ('valu',) and p.store_data & c.w: n = max(n, 2)
        if c.kind in ('vmem', 'ds', 'mfma') and p.store_data & c.w: n = max(n, 1)
    return n

class Asm:
    def __init__(self):
        self.ins = []
    def __call__(self, s):
        for l in s.strip('\n').split('\n'):
            self.ins.append(Ins(l if (l.strip().endswith(':') or not l.strip()) else '    ' + l.strip()))
    def label(self, name):
        self.ins.append(Ins(name + ':'))
    def finalize(self, window=14):
        out = []
        nadd = 0
        for c in self.ins:
            if c.is_label:
                out.append(c); continue
            if c.is_dir or c.empty:
                out.append(c); continue
            dist = 0; req = 0
            for p in reversed(out):
                if p.is_label or p.is_dir or p.empty: continue
                n = need(p, c)
                if n > dist: req = max(req, n - dist)
                dist += p.states()
                if dist >= window: break
            while req > 0:
                k = min(req, 16)
                out.append(Ins('    s_nop %d' % (k - 1))); req -= k; nadd += 1
            out.append(c)
        self.ins = out
        return nadd
    def text(self):
        return '\n'.join(i.text for i in self.ins) + '\n'
```

```python
import sys, argparse
from asmgen import Asm

NAME = 'concat_heads__ssm_conv_s4d__ssm_conv_h3__prompt_kernel'
L = 2048; D = 640

KWS = 4160
KCS = 5 * KWS
UB0 = 4 * KCS
UCS = 4640
UCH = 2 * UCS
PART = UB0 + 5 * UCH
LDS_TOTAL = 163840
STG1 = UB0
STG3 = 0
KGROW = 272
KGW = 57 * KGROW
KNB = UB0
assert KCS % 256 == 64 and UCS % 256 == 32
assert PART + 32768 <= LDS_TOTAL and 4 * KGW <= UB0 and 5 * 8192 <= 5 * UCH

CLUSTER_BYTES = 160 * 4096

P = dict(u=8, logA=10, Aim=12, Cre=14, Cim=16, logdt=18, Dskip=20, q=22, k=24, v=26,
         shift=28, ssmk=30, ssmD=32, out=34, dbg=36, ws=38)
SRD_A, SRD_B, SRD_Q, SRD_WS, SRD_OUT, SRD_DBG, SRD_K = 40, 44, 48, 52, 56, 60, 64
sX, sJ, sW, sXCC, sPART, sCB, sCH = 68, 69, 70, 71, 72, 73, 74
sT0 = 75
sHI = 76
sSELLO, sSELHI = 77, 78
sCHL = 79
sO1, sO2, sO3 = 82, 83, 84
sFEXP, sFMASK, sCNT = 85, 86, 87
sMODE = 92
DEC = LDS_TOTAL - 64
F1, F2, ANN, S1, S2 = 0x08, 0x10, 0x40, 0x80, 0x20

def srd(a, reg, ptr, size, off_s=None):
    if off_s is None:
        a(f's_mov_b32 s{reg}, s{ptr}\ns_mov_b32 s{reg+1}, s{ptr+1}')
    else:
        a(f's_add_u32 s{reg}, s{ptr}, s{off_s}\ns_addc_u32 s{reg+1}, s{ptr+1}, 0')
    a(f's_mov_b32 s{reg+2}, {size}\ns_mov_b32 s{reg+3}, 0x20000')

def S(r): return f's[{r}:{r+3}]'

class Gen:
    def __init__(self, diag=False, spin=400000, bpart=1, dump=None, tfast=64):
        self.tfast = tfast
        self.dump = dump
        self.a = Asm(); self.diag = diag; self.spin = spin
        self.nstamp = 0; self.names = {}; self.nx = 0; self.xnames = []
        self.bpart = bpart

    def stamp(self, name=''):
        if not self.diag: return
        self.a(f's_memrealtime s[88:89]\ns_memtime s[90:91]\ns_waitcnt lgkmcnt(0)\nv_writelane_b32 v254, s88, {self.nstamp}\nv_writelane_b32 v253, s90, {self.nstamp}')
        self.names[self.nstamp] = (self.names.get(self.nstamp, '') + '|' + name) if self.nstamp in self.names and self.names[self.nstamp] != name else name
        self.nstamp += 1

    def xstamp(self, name):
        if not self.diag: return
        idx = 32 + self.nx; self.nx += 1
        self.a(f's_memrealtime s[88:89]\ns_memtime s[90:91]\ns_waitcnt lgkmcnt(0)\nv_writelane_b32 v254, s88, {idx}\nv_writelane_b32 v253, s90, {idx}')
        self.xnames.append(name)

    def uid(self): return len(self.a.ins)

    def prologue(self):
        a = self.a
        a(f'''
s_cmp_ge_u32 s2, 256
s_cbranch_scc1 L_END
s_mov_b32 s{sMODE}, 0
L_START:
s_load_dwordx16 s[8:23], s[0:1], 0
s_load_dwordx16 s[24:39], s[0:1], 64
s_getreg_b32 s{sXCC}, hwreg(HW_REG_XCC_ID, 0, 4)
s_and_b32 s{sX}, s2, 7
s_lshr_b32 s{sJ}, s2, 3
s_lshr_b32 s{sPART}, s{sX}, 2
''')
        if self.bpart == 0: a(f's_xor_b32 s{sPART}, s{sPART}, 1')
        a(f'''
s_and_b32 s{sCB}, s{sX}, 3
s_mul_i32 s{sCB}, s{sCB}, 160
s_and_b32 s{sXCC}, s{sXCC}, 7
v_and_b32 v1, 63, v0
v_lshrrev_b32 v4, 6, v0
v_mul_u32_u24 v3, 1639, v0
v_readfirstlane_b32 s{sW}, v4
v_lshrrev_b32 v3, 16, v3
v_mul_u32_u24 v2, 40, v3
v_sub_u32 v2, v0, v2
s_mov_b32 s{sHI}, 0xffff0000
s_mov_b32 s{sSELLO}, 0x05040100
s_mov_b32 s{sSELHI}, 0x07060302
s_mov_b32 s{sO1}, 163840
s_mov_b32 s{sO2}, 327680
s_mov_b32 s{sO3}, 491520
s_mul_i32 s{sT0}, s{sJ}, 5
s_add_u32 s{sT0}, s{sT0}, s{sW}
s_add_u32 s{sCH}, s{sCB}, s{sT0}
s_lshl_b32 s{sCHL}, s{sT0}, 12
s_lshl_b32 s{sT0}, s{sJ}, 6
v_lshlrev_b32 v4, 3, v3
v_add_u32 v4, s{sT0}, v4
v_mul_u32_u24 v4, 1280, v4
s_lshl_b32 s{sT0}, s{sCB}, 1
v_lshlrev_b32 v5, 3, v2
v_add3_u32 v4, v4, v5, s{sT0}
v_add_u32 v5, 5120, v4
s_waitcnt lgkmcnt(0)
''')
        if self.diag:
            a('v_mov_b32 v254, 0\nv_mov_b32 v253, 0')
            self.stamp('start')
        a(f's_cmp_eq_u32 s{sPART}, 0\ns_cbranch_scc1 L_A1')

    def common_srds(self):
        a = self.a
        a(f's_mul_i32 s{sT0}, s{sX}, {CLUSTER_BYTES}')
        srd(a, SRD_WS, P['ws'], CLUSTER_BYTES, sT0)
        srd(a, SRD_DBG, P['dbg'], 256)
        srd(a, SRD_OUT, P['out'], L * 2 * D * 2)

    def touch_ws(self, vtmp, vd):
        self.a(f'''
s_sub_u32 s{sT0}, 31, s{sJ}
s_lshl_b32 s{sT0}, s{sT0}, 7
s_lshl_b32 s3, s{sMODE}, 30
s_add_u32 s{sT0}, s{sT0}, s3
v_lshlrev_b32 v{vtmp}, 12, v0
v_add_u32 v{vtmp}, s{sT0}, v{vtmp}
buffer_load_dword v{vd}, v{vtmp}, {S(SRD_WS)}, 0 offen
''')
    def touch_dbg(self, vtmp, vd):
        self.a(f'''
s_lshl_b32 s{sT0}, s{sX}, 5
s_lshl_b32 s3, s{sMODE}, 30
s_add_u32 s{sT0}, s{sT0}, s3
v_mov_b32 v{vtmp}, s{sT0}
buffer_load_dword v{vd}, v{vtmp}, {S(SRD_DBG)}, 0 offen
''')

    def phase1_B(self):
        a = self.a
        KR, VR, SW, W, KF, KS, CH = 10, 32, 48, 92, 108, 152, 184
        srd(a, SRD_A, P['k'], L * D * 2)
        a(f'''
v_subrev_u32 v6, {3*1280}, v4
v_mov_b32 v7, 0x40000000
v_cmp_gt_u32 vcc, {3*1280}, v4
v_cndmask_b32 v6, v6, v7, vcc
''')
        for rr in range(3):
            a(f'buffer_load_dwordx2 v[{KR+2*rr}:{KR+2*rr+1}], v6, {S(SRD_A)}, 0 offen offset:{rr*1280}')
        for r in range(8):
            b = 'v4' if r < 4 else 'v5'
            a(f'buffer_load_dwordx2 v[{KR+6+2*r}:{KR+7+2*r}], {b}, {S(SRD_A)}, 0 offen offset:{(r%4)*1280}')
        srd(a, SRD_K, P['shift'], D * 4 * 2)
        a(f'''
s_lshl_b32 s{sT0}, s{sCB}, 3
v_lshlrev_b32 v7, 5, v2
v_add_u32 v7, s{sT0}, v7
buffer_load_dwordx4 v[{SW}:{SW+3}], v7, {S(SRD_K)}, 0 offen
buffer_load_dwordx4 v[{SW+4}:{SW+7}], v7, {S(SRD_K)}, 0 offen offset:16
''')
        srd(a, SRD_B, P['v'], L * D * 2)
        for r in range(8):
            b = 'v4' if r < 4 else 'v5'
            a(f'buffer_load_dwordx2 v[{VR+2*r}:{VR+2*r+1}], {b}, {S(SRD_B)}, 0 offen offset:{(r%4)*1280}')
        self.common_srds()
        self.touch_dbg(8, 252)
        self.stamp('issued')
        a('s_waitcnt vmcnt(9)')
        self.stamp('k landed')
        for e in range(4):
            for jj in range(4):
                src = SW + 2 * e + (jj >> 1)
                if jj & 1: a(f'v_and_b32 v{W+4*jj+e}, s{sHI}, v{src}')
                else:      a(f'v_lshlrev_b32 v{W+4*jj+e}, 16, v{src}')
        for rr in range(11):
            for h in range(2):
                src = KR + 2 * rr + h
                a(f'v_lshlrev_b32 v{KF+4*rr+2*h}, 16, v{src}')
                a(f'v_and_b32 v{KF+4*rr+2*h+1}, s{sHI}, v{src}')
        for r in range(8):
            for h in range(2):
                d = KS + 4 * r + 2 * h
                k = lambda jj: KF + 4 * (r + 3 - jj) + 2 * h
                w = lambda jj: W + 4 * jj + 2 * h
                a(f'v_pk_mul_f32 v[{d}:{d+1}], v[{k(0)}:{k(0)+1}], v[{w(0)}:{w(0)+1}]')
                for jj in range(1, 4):
                    a(f'v_pk_fma_f32 v[{d}:{d+1}], v[{k(jj)}:{k(jj)+1}], v[{w(jj)}:{w(jj)+1}], v[{d}:{d+1}]')
        self.stage_addrs1()
        self.stamp('kshift done')
        a('s_waitcnt vmcnt(1)')
        self.stamp('v landed')
        for r in range(8):
            for h in range(2):
                src = VR + 2 * r + h
                a(f'v_lshlrev_b32 v{KF+4*r+2*h}, 16, v{src}')
                a(f'v_and_b32 v{KF+4*r+2*h+1}, s{sHI}, v{src}')
        for e in range(4):
            h = e >> 1
            if e % 2 == 0:
                for r in range(8):
                    d = KS + 4 * r + 2 * h; s = KF + 4 * r + 2 * h
                    a(f'v_pk_mul_f32 v[{d}:{d+1}], v[{d}:{d+1}], v[{s}:{s+1}]')
            for q in range(4):
                a(f'v_cvt_pk_bf16_f32 v{CH+4*e+q}, v{KS+4*(7-2*q)+e}, v{KS+4*(6-2*q)+e}')
            a(f'ds_write_b128 v236, v[{CH+4*e}:{CH+4*e+3}] offset:{128*e}')
        self.publish1()
        self.touch_ws(8, 251)
        a(f's_lshl_b32 s{sT0}, s{sCH}, 12')
        srd(a, SRD_K, P['ssmk'], 4096, sT0)
        a('v_lshlrev_b32 v8, 2, v1')
        for j in range(16):
            a(f'buffer_load_dword v{88+j}, v8, {S(SRD_K)}, 0 offen offset:{256*j}')
        for j in range(16):
            a(f'buffer_load_dword v{104+j}, v8, {S(SRD_K)}, 0 offen offset:{256*j+4}')
        srd(a, SRD_B, P['ssmD'], D * 2)
        a(f's_lshl_b32 s{sT0}, s{sCH}, 1\nv_mov_b32 v9, s{sT0}')
        a(f'buffer_load_ushort v255, v9, {S(SRD_B)}, 0 offen')
        a('s_waitcnt vmcnt(34)')
        self.stamp('st done')
        a('s_barrier')
        self.setflag(F1, S1)
        self.stamp('flag1')
        self.conv_setup()
        self.poll(F1, S1, True)
        self.stamp('poll1')
        self.uloads()
        self.check_restart()
        a('s_waitcnt vmcnt(16)')
        self.stamp('K landed')
        self.kcopies(88, 104)
        self.stamp('K done')

    def stage_addrs1(self):
        a = self.a
        a(f'''
v_sub_u32 v6, 7, v3
v_and_b32 v7, 7, v2
v_xor_b32 v6, v6, v7
v_lshlrev_b32 v6, 4, v6
v_lshlrev_b32 v7, 9, v2
v_add_u32 v7, {STG1}, v7
v_add_u32 v236, v6, v7
''')
        self.stage_lin_addr(STG1, 240)
        a(f'''
s_sub_u32 s{sT0}, 31, s{sJ}
s_lshl_b32 s{sT0}, s{sT0}, 7
v_lshrrev_b32 v7, 3, v0
v_lshlrev_b32 v7, 12, v7
v_and_b32 v6, 7, v0
v_lshlrev_b32 v6, 4, v6
v_add3_u32 v237, v7, v6, s{sT0}
''')

    def publish1(self):
        a = self.a
        a('s_waitcnt lgkmcnt(0)')
        self.stamp('staged')
        a('s_barrier')
        for i in range(4):
            a(f'ds_read_b128 v[{220+4*i}:{223+4*i}], v{240+i}')
        so = ['0', f's{sO1}', f's{sO2}', f's{sO3}']
        for i in range(4):
            a(f's_waitcnt lgkmcnt({3-i})')
            a(f'buffer_store_dwordx4 v[{220+4*i}:{223+4*i}], v237, {S(SRD_WS)}, {so[i]} offen')
        lab = f'L_ps{self.uid()}'
        a(f's_cmp_eq_u32 s{sMODE}, 0\ns_cbranch_scc1 {lab}')
        for i in range(4):
            a(f'buffer_store_dwordx4 v[{220+4*i}:{223+4*i}], v237, {S(SRD_WS)}, {so[i]} offen sc1')
        a('s_waitcnt vmcnt(0)')
        a.label(lab)
        self.stamp('st issued')

    def stage_lin_addr(self, base, vd):
        a = self.a
        a('v_lshrrev_b32 v6, 3, v0\nv_and_b32 v7, 7, v0')
        for i in range(4):
            a(f'''
v_add_u32 v8, {40*i}, v6
v_lshrrev_b32 v9, 2, v8
v_and_b32 v9, 7, v9
v_xor_b32 v9, v9, v7
v_lshlrev_b32 v9, 4, v9
v_lshlrev_b32 v8, 7, v8
v_add_u32 v8, {base}, v8
v_add_u32 v{vd+i}, v8, v9
''')

    def setflag(self, val, sval):
        a = self.a
        n = self.uid()
        a(f'''
s_cmp_lg_u32 s{sW}, 1
s_cbranch_scc1 L_nf{n}
s_lshl_b32 s{sT0}, s{sX}, 5
s_add_u32 s{sT0}, s{sT0}, s{sJ}
s_mov_b64 exec, 1
s_cmp_eq_u32 s{sMODE}, 0
s_cbranch_scc0 L_sf{n}
s_or_b32 s3, s{sXCC}, {val}
v_mov_b32 v6, s{sT0}
v_mov_b32 v7, s3
buffer_store_byte v7, v6, {S(SRD_DBG)}, 0 offen
s_branch L_rf{n}
''')
        a.label(f'L_sf{n}')
        self.own_or(sval | ANN)
        a.label(f'L_rf{n}')
        a('s_mov_b64 exec, -1')
        a.label(f'L_nf{n}')

    def own_or(self, bits):
        self.a(f'''
s_and_b32 s3, s{sT0}, 3
s_lshl_b32 s3, s3, 3
s_or_b32 s4, s{sXCC}, {bits}
s_lshl_b32 s4, s4, s3
s_and_b32 s3, s{sT0}, 0xfc
v_mov_b32 v250, s3
v_mov_b32 v247, s4
buffer_atomic_or v247, v250, {S(SRD_DBG)}, 0 offen sc1
''')

    def poll(self, fbits, sbit, first):
        a = self.a
        n = self.uid()
        a(f'''
s_cmp_lg_u32 s{sW}, 1
s_cbranch_scc1 L_pd{n}
s_lshl_b32 s5, s{sX}, 5
v_and_b32 v249, 31, v1
v_add_u32 v6, s5, v249
v_and_b32 v6, 0xfc, v6
v_and_b32 v249, 3, v249
v_lshlrev_b32 v249, 3, v249
s_or_b32 s{sFEXP}, s{sXCC}, {fbits}
s_mov_b32 s{sCNT}, 0
s_mov_b32 s6, 0
s_cmp_eq_u32 s{sMODE}, 0
s_cbranch_scc0 L_ps{n}
''')
        a.label(f'L_pl{n}')
        a(f'''
buffer_load_dword v7, v6, {S(SRD_DBG)}, 0 offen sc1
s_add_u32 s{sCNT}, s{sCNT}, 1
s_waitcnt vmcnt(0)
v_lshrrev_b32 v7, v249, v7
v_and_b32 v7, {fbits | 7}, v7
v_cmp_ne_u32 vcc, s{sFEXP}, v7
s_cmp_eq_u64 vcc, 0
s_cbranch_scc1 L_pw{n}
''')
        if first:
            a(f'''
s_cmp_lt_u32 s{sCNT}, {self.tfast}
s_cbranch_scc1 L_pl{n}
s_lshl_b32 s{sT0}, s{sX}, 5
s_add_u32 s{sT0}, s{sT0}, s{sJ}
s_mov_b64 exec, 1
''')
            self.own_or(ANN)
            a(f'''
s_mov_b64 exec, -1
v_mov_b32 v7, 0
buffer_atomic_or v7, v6, {S(SRD_DBG)}, 0 offen sc0 sc1
s_waitcnt vmcnt(0)
v_lshrrev_b32 v7, v249, v7
v_and_b32 v7, {ANN | 7}, v7
s_or_b32 s3, s{sXCC}, {ANN}
v_cmp_le_u32 vcc, {ANN}, v7
v_cmp_ne_u32 s[4:5], s3, v7
s_and_b64 vcc, vcc, s[4:5]
s_cmp_eq_u64 vcc, 0
s_cselect_b32 s6, 0, 1
s_cbranch_scc0 L_pw{n}
''')
        a(f'''
s_cmp_lt_u32 s{sCNT}, {self.spin}
s_cbranch_scc1 L_pl{n}
s_branch L_pw{n}
''')
        a.label(f'L_ps{n}')
        a(f'''
v_mov_b32 v7, 0
buffer_atomic_or v7, v6, {S(SRD_DBG)}, 0 offen sc0 sc1
s_add_u32 s{sCNT}, s{sCNT}, 1
s_waitcnt vmcnt(0)
v_lshrrev_b32 v7, v249, v7
v_and_b32 v7, {sbit}, v7
v_cmp_eq_u32 vcc, 0, v7
s_cmp_eq_u64 vcc, 0
s_cbranch_scc1 L_pw{n}
s_cmp_lt_u32 s{sCNT}, {self.spin}
s_cbranch_scc1 L_ps{n}
''')
        a.label(f'L_pw{n}')
        if first:
            a(f'v_mov_b32 v6, {DEC}\nv_mov_b32 v7, s6\nds_write_b32 v6, v7\ns_waitcnt lgkmcnt(0)')
        a.label(f'L_pd{n}')
        a('s_barrier')

    def check_restart(self):
        a = self.a
        n = self.uid()
        a(f'''
v_mov_b32 v6, {DEC}
ds_read_b32 v7, v6
s_waitcnt lgkmcnt(0)
v_readfirstlane_b32 s3, v7
s_cmp_eq_u32 s3, 0
s_cbranch_scc1 L_nr{n}
s_waitcnt vmcnt(0)
s_barrier
s_mov_b32 s{sMODE}, 1
s_branch L_START
''')
        a.label(f'L_nr{n}')

    def uloads(self):
        a = self.a
        a('v_lshlrev_b32 v6, 2, v1')
        for j in range(16):
            a(f'buffer_load_dword v{72+j}, v6, {S(SRD_WS)}, s{sCHL} offen offset:{256*j} sc1')

    def kcopies(self, E, E1):
        a = self.a
        for j in range(16):
            a(f'v_alignbit_b32 v{E1+j}, v{E1+j}, v{E+j}, 16')
        a(f'''
s_mul_i32 s{sT0}, s{sW}, {KWS}
s_mov_b32 m0, s{sT0}
v_readlane_b32 s3, v{E}, 0
v_lshlrev_b32 v6, 2, v1
v_add_u32 v6, s{sT0}, v6
s_lshl_b32 s3, s3, 16
v_mov_b32 v7, 0
v_mov_b32 v8, s3
v_cmp_eq_u32 vcc, 13, v1
v_cndmask_b32 v9, v7, v8, vcc
v_cmp_eq_u32 vcc, 12, v1
v_cndmask_b32 v8, v7, v8, vcc
s_mov_b64 exec, 0x3fff
ds_write_b32 v6, v9
ds_write_b32 v6, v7 offset:{KCS}
ds_write_b32 v6, v8 offset:{2*KCS}
ds_write_b32 v6, v7 offset:{3*KCS}
s_mov_b64 exec, -1
''')
        for j in range(16):
            a(f'ds_write_addtid_b32 v{E1+j} offset:{4*14 + 256*j}')
        for j in range(16):
            a(f'ds_write_addtid_b32 v{E+j} offset:{KCS + 4*13 + 256*j}')
        for j in range(16):
            a(f'ds_write_addtid_b32 v{E1+j} offset:{2*KCS + 4*13 + 256*j}')
        a(f's_add_u32 s{sT0}, s{sT0}, 8192\ns_mov_b32 m0, s{sT0}\ns_nop 0')
        for j in range(16):
            a(f'ds_write_addtid_b32 v{E+j} offset:{3*KCS - 8192 + 4*12 + 256*j}')

    def ucopies(self):
        a = self.a
        X = 56000
        a(f'''
s_mul_i32 s{sT0}, s{sW}, {UCH}
s_add_u32 s3, s{sT0}, {UB0 - X}
s_mov_b32 m0, s3
s_add_u32 s{sT0}, s{sT0}, {UB0}
v_lshlrev_b32 v7, 3, v1
v_add_u32 v7, s{sT0}, v7
v_mov_b32 v8, 0
v_mov_b32 v9, 0
s_mov_b32 exec_hi, 0x03ffffff
ds_write_b64 v7, v[8:9] offset:4104
ds_write_b64 v7, v[8:9] offset:{UCS + 4112}
s_mov_b64 exec, -1
''')
        for j in range(16):
            if j % 4 == 0: a(f's_waitcnt vmcnt({self.uyoung + 12 - j})')
            a(f'ds_write_addtid_b32 v{72+j} offset:{X + 8 + 256*j}')
            a(f'ds_write_addtid_b32 v{72+j} offset:{X + UCS + 16 + 256*j}')

    def phase1_A(self):
        a = self.a
        UR, PR, CH = 10, 26, 184
        srd(a, SRD_A, P['u'], L * D * 2)
        for r in range(8):
            b = 'v4' if r < 4 else 'v5'
            a(f'buffer_load_dwordx2 v[{UR+2*r}:{UR+2*r+1}], {b}, {S(SRD_A)}, 0 offen offset:{(r%4)*1280}')
        a(f's_lshl_b32 s{sT0}, s{sCH}, 8\nv_lshlrev_b32 v8, 2, v1')
        for i, nm in enumerate(['logA', 'Aim', 'Cre', 'Cim']):
            srd(a, 4, P[nm], 256, sT0)
            a(f'buffer_load_dword v{PR+i}, v8, s[4:7], 0 offen\ns_nop 0')
        a(f's_mul_i32 s3, s{sJ}, 5\ns_add_u32 s3, s3, s{sCB}\ns_add_u32 s3, s3, 4\ns_lshl_b32 s{sT0}, s3, 8')
        for i, nm in enumerate(['logA', 'Aim', 'Cre', 'Cim']):
            srd(a, 4, P[nm], 256, sT0)
            a(f'buffer_load_dword v{PR+6+i}, v8, s[4:7], 0 offen\ns_nop 0')
        srd(a, SRD_B, P['logdt'], D * 2)
        srd(a, SRD_Q, P['Dskip'], D * 2)
        a(f's_lshl_b32 s{sT0}, s{sCH}, 1\nv_mov_b32 v9, s{sT0}\ns_lshl_b32 s3, s3, 1\nv_mov_b32 v7, s3')
        a(f'buffer_load_ushort v{PR+4}, v9, {S(SRD_B)}, 0 offen')
        a(f'buffer_load_ushort v{PR+10}, v7, {S(SRD_B)}, 0 offen')
        a(f'buffer_load_ushort v255, v9, {S(SRD_Q)}, 0 offen')
        self.common_srds()
        self.touch_dbg(8, 252)
        self.touch_ws(8, 251)
        self.stage_addrs1()
        self.stamp('issued')
        a('s_waitcnt vmcnt(13)')
        self.stamp('u landed'); self.stamp('-'); self.stamp('-')
        for e in range(4):
            sel = sSELHI if (e & 1) else sSELLO
            for q in range(4):
                lo = UR + 2 * (7 - 2 * q) + (e >> 1); hi = UR + 2 * (6 - 2 * q) + (e >> 1)
                a(f'v_perm_b32 v{CH+4*e+q}, v{hi}, v{lo}, s{sel}')
            a(f'ds_write_b128 v236, v[{CH+4*e}:{CH+4*e+3}] offset:{128*e}')
        self.publish1()
        a('s_waitcnt vmcnt(0)')
        self.stamp('st done')
        a('s_barrier')
        self.setflag(F1, S1)
        self.stamp('flag1')
        self.kgen(PR)
        self.stamp('K done')
        self.conv_setup()
        self.poll(F1, S1, True)
        self.stamp('poll1')
        self.uloads()
        self.check_restart()
        self.stamp('-')

    def cmul(self, d, x, y):
        a = self.a
        a(f'v_pk_mul_f32 v[{d}:{d+1}], v[{x}:{x+1}], v[{y}:{y+1}] op_sel_hi:[0,1]')
        a(f'v_pk_fma_f32 v[{d}:{d+1}], v[{x}:{x+1}], v[{y}:{y+1}], v[{d}:{d+1}] op_sel:[1,1,0] op_sel_hi:[1,0,1] neg_lo:[1,0,0]')

    def cexp(self, d, al, om, scale_sgpr):
        a = self.a
        if scale_sgpr is None:
            a(f'v_exp_f32 v60, v{al}\nv_fract_f32 v61, v{om}')
        else:
            a(f'v_mul_f32 v60, s{scale_sgpr}, v{al}\nv_mul_f32 v61, s{scale_sgpr}, v{om}')
            a('v_exp_f32 v60, v60\nv_fract_f32 v61, v61')
        a(f'v_cos_f32 v{d}, v61\nv_sin_f32 v{d+1}, v61')
        a(f'v_mul_f32 v{d}, v60, v{d}\nv_mul_f32 v{d+1}, v60, v{d+1}')

    def ktask(self, PR, half, ACC):
        a = self.a
        LOG2E = 0x3fb8aa3b; INV2PI = 0x3e22f983
        AL, OM = 52, 53; C0 = 54; DT = 56
        E1, E2, E4, E8, E128, E256, E512, E1024, E2048 = 64, 66, 68, 70, 72, 74, 76, 78, 80
        X, Y, T = 82, 84, 86
        G256, G512, G516 = 88, 90, 92
        RA = 95
        OPB = 116
        if half == 'w':
            unp = lambda d, s: f'v_lshlrev_b32 v{d}, s7, v{s}\nv_and_b32 v{d}, s{sHI}, v{d}'
        elif half: unp = lambda d, s: f'v_and_b32 v{d}, s{sHI}, v{s}'
        else:      unp = lambda d, s: f'v_lshlrev_b32 v{d}, 16, v{s}'
        a(f'''
v_lshlrev_b32 v{DT}, 16, v{PR+4}
v_mul_f32 v{DT}, {LOG2E:#x}, v{DT}
v_exp_f32 v{DT}, v{DT}
v_cvt_pk_bf16_f32 v{DT}, v{DT}, v{DT}
v_and_b32 v{DT}, s{sHI}, v{DT}
''')
        a(unp(AL, PR + 0))
        a(f'''
v_mul_f32 v{AL}, {LOG2E:#x}, v{AL}
v_exp_f32 v{AL}, v{AL}
v_cvt_pk_bf16_f32 v{AL}, v{AL}, v{AL}
v_and_b32 v{AL}, s{sHI}, v{AL}
v_mul_f32 v{AL}, v{AL}, v{DT}
v_mul_f32 v{AL}, {(LOG2E | 0x80000000):#x}, v{AL}
''')
        a(unp(OM, PR + 1))
        a(f'v_mul_f32 v{OM}, v{OM}, v{DT}\nv_mul_f32 v{OM}, {INV2PI:#x}, v{OM}')
        a(unp(C0, PR + 2)); a(unp(C0 + 1, PR + 3))
        a(f'v_add_f32 v{DT+1}, v{DT}, v{DT}\nv_mul_f32 v{C0}, v{C0}, v{DT+1}\nv_mul_f32 v{C0+1}, v{C0+1}, v{DT+1}')
        a('s_mov_b32 s5, 0x41000000\ns_mov_b32 s6, 0x43000000')
        self.cexp(E8, AL, OM, 5)
        self.cexp(E1, AL, OM, None)
        self.cexp(E128, AL, OM, 6)
        self.xstamp('kt setup')
        def put(row, x, neg=False):
            tt = T + (row & 1)
            a(f'v_cvt_pk_bf16_f32 v{tt}, v{x}, {"-" if neg else ""}v{x+1}')
            a(f'ds_write_addtid_b32 v{tt} offset:{row*KGROW}')
        a(f'v_mov_b32 v{X}, 1.0\nv_mov_b32 v{X+1}, 0'); put(0, X, True)
        put(1, E8, True)
        cur = E8
        for b in range(2, 16):
            nx = X if cur != X else Y
            self.cmul(nx, cur, E8); put(b, nx, True); cur = nx
        self.cmul(E2, E1, E1); self.cmul(E4, E2, E2)
        self.cmul(E256, E128, E128); self.cmul(E512, E256, E256)
        self.cmul(E1024, E512, E512); self.cmul(E2048, E1024, E1024)
        def chain(row0, start, step, n):
            cur = start
            put(row0, cur)
            for i in range(1, n):
                nx = X if cur != X else Y
                self.cmul(nx, cur, step); put(row0 + i, nx); cur = nx
        chain(16, C0, E1, 8)
        self.cmul(G256, C0, E128); chain(24, G256, E1, 8)
        self.cmul(G256, C0, E256); chain(32, G256, E2, 4)
        self.cmul(G512, G256, E128); chain(36, G512, E2, 4)
        self.cmul(G512, C0, E512); put(40, G512)
        self.cmul(G516, G512, E4); put(41, G516)
        c0, c1 = G512, G516
        for i in range(1, 4):
            n0 = X if c0 != X else G512; n1 = Y if c1 != Y else G516
            self.cmul(n0, c0, E128); put(40 + 2 * i, n0)
            self.cmul(n1, c1, E128); put(41 + 2 * i, n1)
            c0, c1 = n0, n1
        self.cmul(G256, C0, E1024); chain(48, G256, E128, 8)
        self.cmul(G256, C0, E2048); put(56, G256)
        self.xstamp('kt values')
        a('s_waitcnt lgkmcnt(0)')
        for ks in range(4):
            a(f'ds_read_b128 v[{OPB+4*ks}:{OPB+4*ks+3}], v{RA} offset:{64*ks}')
        for tile in range(3):
            for ks in range(4):
                o = OPB + 16 + 16 * tile + 4 * ks
                a(f'ds_read_b128 v[{o}:{o+3}], v{RA} offset:{(16+16*tile)*KGROW + 64*ks}')
        for tile in range(3):
            a(f's_waitcnt lgkmcnt({8-4*tile})')
            for ks in range(4):
                o = OPB + 16 + 16 * tile + 4 * ks
                a(f'v_mfma_f32_16x16x32_bf16 v[{ACC+4*tile}:{ACC+4*tile+3}], v[{o}:{o+3}], v[{OPB+4*ks}:{OPB+4*ks+3}], v[{ACC+4*tile}:{ACC+4*tile+3}]')
        self.xstamp('kt mfma')

    def kexpand(self, ACC):
        a = self.a
        KN = 16; T32 = 4608
        a(f'''
s_lshl_b32 s{sT0}, s{sW}, 13
s_add_u32 s{sT0}, s{sT0}, {KNB}
v_and_b32 v6, 15, v1
v_lshrrev_b32 v7, 4, v1
v_and_b32 v8, 1, v7
v_lshlrev_b32 v8, 3, v8
v_lshrrev_b32 v9, 1, v7
v_lshlrev_b32 v9, 8, v9
v_lshlrev_b32 v10, 4, v6
v_add3_u32 v8, v8, v9, v10
v_add_u32 v8, s{sT0}, v8
v_lshlrev_b32 v9, 6, v7
v_lshlrev_b32 v10, 2, v6
v_add_u32 v10, v10, v9
v_lshlrev_b32 v11, 1, v6
v_add_u32 v11, v11, v9
v_cmp_gt_u32 vcc, 2, v7
v_cndmask_b32 v10, v11, v10, vcc
v_mov_b32 v11, 128
v_mov_b32 v12, 8
v_cndmask_b32 v11, v11, v12, vcc
v_lshlrev_b32 v10, 2, v10
v_add_u32 v10, s{sT0}, v10
v_add_u32 v11, v10, v11
v_add_u32 v12, v9, v6
v_lshlrev_b32 v12, 2, v12
v_add_u32 v12, s{sT0}, v12
v_and_b32 v13, 31, v1
v_lshlrev_b32 v27, 4, v13
v_add_u32 v27, s{sT0}, v27
v_lshlrev_b32 v28, 3, v1
v_add_u32 v28, s{sT0}, v28
v_lshlrev_b32 v29, 2, v1
v_add_u32 v29, s{sT0}, v29
v_lshlrev_b32 v30, 4, v1
v_add_u32 v30, s{sT0}, v30
s_mov_b32 s3, 0xffff
''')
        a(f'v_cvt_pk_bf16_f32 v14, v{ACC}, v{ACC+1}\nv_cvt_pk_bf16_f32 v15, v{ACC+2}, v{ACC+3}')
        a(f'ds_write_b64 v8, v[14:15] offset:{KN}')
        for r in range(4): a(f'v_cvt_pk_bf16_f32 v{16+r}, v{ACC+4+r}, v{ACC+4+r}')
        a(f'ds_write_b64 v10, v[16:17] offset:{T32 + 4*256}\nds_write_b64 v11, v[18:19] offset:{T32 + 4*256}')
        for r in range(4): a(f'v_cvt_pk_bf16_f32 v{20+r}, v{ACC+8+r}, v{ACC+8+r}')
        for r in range(4): a(f'ds_write_b32 v12, v{20+r} offset:{T32 + 4*512 + 64*r}')
        a(f'''
v_and_b32 v13, 1, v1
v_cmp_eq_u32 vcc, 1, v13
s_waitcnt lgkmcnt(0)
ds_read_b128 v[32:35], v27 offset:{T32 + 4*256}
ds_read_b32 v36, v27 offset:{T32 + 4*256 + 16}
ds_read_b64 v[60:61], v28 offset:{T32 + 4*384}
ds_read_b32 v62, v28 offset:{T32 + 4*384 + 8}
ds_read_b32 v64, v29 offset:{T32 + 4*512}
ds_read_b32 v65, v29 offset:{T32 + 4*513}
ds_read_b32 v66, v29 offset:{T32 + 4*576}
ds_read_b32 v67, v29 offset:{T32 + 4*577}
s_waitcnt lgkmcnt(6)
v_bfi_b32 v33, s3, v33, v34
v_bfi_b32 v35, s3, v35, v36
ds_write_b128 v27, v[32:35] offset:{KN + 16*32}
s_waitcnt lgkmcnt(5)
v_mov_b32 v68, v60
v_bfi_b32 v69, s3, v60, v61
v_mov_b32 v70, v61
v_mov_b32 v71, v62
ds_write_b128 v30, v[68:71] offset:{KN + 16*64}
s_waitcnt lgkmcnt(2)
v_mov_b32 v72, v64
v_mov_b32 v73, v64
v_cndmask_b32 v74, v64, v65, vcc
v_bfi_b32 v74, s3, v74, v65
v_mov_b32 v75, v65
ds_write_b128 v30, v[72:75] offset:{KN + 16*128}
v_mov_b32 v76, v66
v_mov_b32 v77, v66
v_cndmask_b32 v78, v66, v67, vcc
v_bfi_b32 v78, s3, v78, v67
v_mov_b32 v79, v67
ds_write_b128 v30, v[76:79] offset:{KN + 16*192}
s_waitcnt lgkmcnt(0)
''')
        for j in range(16):
            a(f'ds_read_b32 v{100+j}, v29 offset:{KN + 256*j}')
        a('s_waitcnt lgkmcnt(8)')
        for j in range(16):
            a(f'ds_read_b32 v{116+j}, v29 offset:{KN + 256*j + 4}')
        a('s_waitcnt lgkmcnt(0)')

    def kgen(self, PR):
        a = self.a
        ACC = 40
        n = self.uid()
        a(f'''
s_mul_i32 s{sT0}, s{sW}, {KGW}
s_mov_b32 m0, s{sT0}
v_and_b32 v6, 15, v1
v_lshrrev_b32 v7, 4, v1
v_mul_u32_u24 v95, {KGROW}, v6
v_lshlrev_b32 v7, 4, v7
v_add3_u32 v95, v95, v7, s{sT0}
''')
        for r in range(12): a(f'v_mov_b32 v{ACC+r}, 0')
        a(f'''
s_cmp_eq_u32 s{sW}, 4
s_cbranch_scc1 L_KG4a{n}
s_cmp_eq_u32 s{sW}, 1
s_cbranch_scc1 L_KGX{n}
s_cmp_eq_u32 s{sW}, 2
s_cbranch_scc1 L_KGX{n}
''')
        self.ktask(PR, 0, ACC)
        a(f's_branch L_KG4a{n}')
        a.label(f'L_KGX{n}')
        a(f's_sub_u32 s7, 2, s{sW}\ns_lshl_b32 s7, s7, 4')
        self.ktask(PR + 6, 'w', ACC)
        a(f'''
s_sub_u32 s3, s{sW}, 1
s_mul_i32 s3, s3, 3072
s_add_u32 s3, s3, {PART}
v_lshlrev_b32 v6, 4, v1
v_add_u32 v6, s3, v6
s_nop 7
''')
        for t in range(3):
            a(f'ds_write_b128 v6, v[{ACC+4*t}:{ACC+4*t+3}] offset:{1024*t}')
        for r in range(12): a(f'v_mov_b32 v{ACC+r}, 0')
        a('s_waitcnt lgkmcnt(0)')
        a.label(f'L_KG4a{n}')
        a('s_barrier')
        a(f's_cmp_eq_u32 s{sW}, 4\ns_cbranch_scc1 L_KG4b{n}')
        a(f's_cmp_eq_u32 s{sW}, 0\ns_cbranch_scc1 L_KGT1{n}\ns_cmp_eq_u32 s{sW}, 3\ns_cbranch_scc1 L_KGT1{n}')
        self.ktask(PR, 0, ACC)
        a.label(f'L_KGT1{n}')
        self.ktask(PR, 1, ACC)
        a(f's_branch L_KGE{n}')
        a.label(f'L_KG4b{n}')
        a(f'v_lshlrev_b32 v6, 4, v1\nv_add_u32 v6, {PART}, v6')
        for t in range(6):
            a(f'ds_read_b128 v[{100+4*t}:{103+4*t}], v6 offset:{1024*t}')
        a('s_waitcnt lgkmcnt(0)')
        for r in range(12):
            a(f'v_add_f32 v{ACC+r}, v{100+r}, v{112+r}')
        a.label(f'L_KGE{n}')
        a('s_nop 7')
        self.xstamp('pre expand')
        self.kexpand(ACC)
        self.xstamp('expanded')
        a('s_barrier')
        self.xstamp('Kb')
        self.kcopies(100, 116)

    def conv_setup(self):
        a = self.a
        vKA, vUB, vKA4, vUB4, AD = 200, 201, 202, 203, 204
        a(f'''
v_and_b32 v6, 15, v1
v_lshrrev_b32 v7, 4, v1
v_and_b32 v8, 3, v6
v_mul_u32_u24 v8, {KCS}, v8
v_lshrrev_b32 v9, 2, v6
v_add_u32 v9, v9, v7
v_lshlrev_b32 v9, 4, v9
v_add_u32 v8, v8, v9
s_mul_i32 s{sT0}, s{sW}, {KWS}
v_add_u32 v{vKA}, s{sT0}, v8
s_lshl_b32 s{sT0}, s{sW}, 7
s_add_u32 s{sT0}, s{sT0}, {4*KWS}
v_add_u32 v{vKA4}, s{sT0}, v8
v_and_b32 v8, 1, v6
v_mul_u32_u24 v8, {UCS}, v8
v_lshrrev_b32 v9, 1, v6
v_lshlrev_b32 v9, 6, v9
v_sub_u32 v8, v8, v9
v_lshlrev_b32 v9, 4, v7
v_add_u32 v8, v8, v9
v_add_u32 v8, {4048 - 3584 + UB0}, v8
s_mul_i32 s{sT0}, s{sW}, {UCH}
v_add_u32 v{vUB}, s{sT0}, v8
s_lshl_b32 s{sT0}, s{sW}, 7
s_add_u32 s{sT0}, s{sT0}, {4*UCH}
v_add_u32 v{vUB4}, s{sT0}, v8
v_and_b32 v8, 1, v6
v_lshlrev_b32 v8, 3, v8
v_lshrrev_b32 v9, 1, v6
v_lshlrev_b32 v9, 6, v9
v_add_u32 v8, v8, v9
v_lshlrev_b32 v9, 4, v7
v_add_u32 v248, v8, v9
''')
        for r in range(64): a(f'v_mov_b32 v{8+r}, 0')

    def conv_diag(self):
        a = self.a
        AD = 204
        a(f'''
v_and_b32 v6, 15, v1
v_lshrrev_b32 v7, 4, v1
v_lshrrev_b32 v72, 2, v6
v_sub_u32 v72, 3, v72
v_cmp_eq_u32 vcc, v72, v7
v_and_b32 v73, 0xffff, v255
v_cndmask_b32 v73, 0, v73, vcc
v_and_b32 v72, 3, v6
v_sub_u32 v72, 3, v72
v_and_b32 v74, 1, v72
v_lshlrev_b32 v74, 4, v74
v_lshlrev_b32 v73, v74, v73
v_cmp_gt_u32 vcc, 2, v72
v_cndmask_b32 v{AD}, 0, v73, vcc
v_cndmask_b32 v{AD+1}, v73, 0, vcc
v_mov_b32 v{AD+2}, 0
v_mov_b32 v{AD+3}, 0
''')

    def phase2(self):
        a = self.a
        self.uyoung = 0
        self.ucopies()
        self.conv_diag()
        a(f's_cmp_eq_u32 s{sPART}, 0\ns_cbranch_scc1 L_NOQ')
        srd(a, SRD_Q, P['q'], L * D * 2)
        for r in range(8):
            b = 'v4' if r < 4 else 'v5'
            a(f'buffer_load_dwordx2 v[{208+2*r}:{209+2*r}], {b}, {S(SRD_Q)}, 0 offen offset:{(r%4)*1280}')
        a.label('L_NOQ')
        a(f'''
v_lshlrev_b32 v6, 4, v1
s_lshl_b32 s{sT0}, s{sW}, 13
s_add_u32 s{sT0}, s{sT0}, {PART}
v_add_u32 v6, s{sT0}, v6
s_waitcnt lgkmcnt(0)
s_barrier
''')
        self.stamp('copies')

    def conv(self):
        a = self.a
        ACC, ACC4 = 8, 40
        AT = [72, 136]; BT = [104, 168]
        vKA, vUB, vKA4, vUB4, AD = 200, 201, 202, 203, 204
        a(f's_cmp_eq_u32 s{sW}, 4\ns_cbranch_scc1 L_W4')
        tasks = [('4', 0), ('4', 1)] + [('o', i) for i in range(8)]
        def loads(st, task):
            kind, i = task
            ka, ub = (vKA4, vUB4) if kind == '4' else (vKA, vUB)
            out = []
            for jd in range(8):
                out.append(f'ds_read_b128 v[{AT[st]+4*jd}:{AT[st]+4*jd+3}], v{ka} offset:{512*jd+64*i}')
                out.append(f'ds_read_b128 v[{BT[st]+4*jd}:{BT[st]+4*jd+3}], v{ub} offset:{3584-512*jd+64*i}')
            return out
        def mf(acc, t, A, B):
            return f'v_mfma_f32_16x16x32_bf16 v[{acc+4*t}:{acc+4*t+3}], v[{A}:{A+3}], v[{B}:{B+3}], v[{acc+4*t}:{acc+4*t+3}]'
        def mfmas(st, task):
            kind, i = task
            acc = ACC4 if kind == '4' else ACC
            prs = [(j, d) for j in range(8) for d in range(8) if j + d <= 7]
            prs.sort(key=lambda p: (max(p), p[0]))
            out = [mf(acc, j + d, AT[st] + 4 * j, BT[st] + 4 * d) for (j, d) in prs]
            if kind == 'o' and i == 0:
                out += [mf(acc, d, AD, BT[st] + 4 * d) for d in range(8)]
            return out
        for l in loads(0, tasks[0]): a(l)
        for n, task in enumerate(tasks[:-1]):
            st = n & 1
            M = mfmas(st, task)
            side = loads(st ^ 1, tasks[n + 1])
            if n == 2:
                side += [f'ds_write_b128 v6, v[{ACC4+4*t}:{ACC4+4*t+3}] offset:{1024*t}' for t in range(8)]
            a('s_waitcnt lgkmcnt(0)')
            if n == 3: a('s_barrier')
            si = 0
            for m, x in enumerate(M):
                a(x)
                if si < len(side) and (m % 2 == 0 or len(side) > 18):
                    a(side[si]); si += 1
            while si < len(side): a(side[si]); si += 1
        st = (len(tasks) - 1) & 1
        a('s_waitcnt lgkmcnt(0)')
        def emit_store(t):
            c = 40 + 2 * t
            a(f'v_cvt_pk_bf16_f32 v{c}, v{ACC+4*t}, v{ACC+4*t+1}\nv_cvt_pk_bf16_f32 v{c+1}, v{ACC+4*t+2}, v{ACC+4*t+3}')
            a(f'buffer_store_dwordx2 v[{c}:{c+1}], v248, {S(SRD_WS)}, s{sCHL} offen offset:{512*t}')
        for t in range(7, -1, -1):
            for j in range(t + 1):
                a(mf(ACC, t, AT[st] + 4 * j, BT[st] + 4 * (t - j)))
            if t + 2 <= 7: emit_store(t + 2)
        emit_store(1); emit_store(0)
        a('s_branch L_CONVDONE')
        a.label('L_W4')
        a(f'''
v_sub_u32 v8, {UB0 + 4*UCH + 4096 - 3584}, v248
v_lshlrev_b32 v6, 4, v1
v_add_u32 v6, {PART}, v6
v_lshlrev_b32 v9, 16, v255
''')
        for t in range(8):
            a(f'ds_read_b64 v[{12+2*t}:{13+2*t}], v8 offset:{3584 - 512*t}')
        a('s_barrier')
        for t in range(8):
            for w in range(4):
                a(f'ds_read_b128 v[{72+16*t+4*w}:{75+16*t+4*w}], v6 offset:{8192*w + 1024*t}')
        a('s_waitcnt lgkmcnt(0)')
        for t in range(8):
            b = 72 + 16 * t
            for r in range(0, 4, 2):
                a(f'v_pk_add_f32 v[{b+r}:{b+r+1}], v[{b+r}:{b+r+1}], v[{b+4+r}:{b+5+r}]')
                a(f'v_pk_add_f32 v[{b+8+r}:{b+9+r}], v[{b+8+r}:{b+9+r}], v[{b+12+r}:{b+13+r}]')
                a(f'v_pk_add_f32 v[{b+r}:{b+r+1}], v[{b+r}:{b+r+1}], v[{b+8+r}:{b+9+r}]')
            u0, u1 = 12 + 2 * t, 13 + 2 * t
            a(f'''
v_and_b32 v30, s{sHI}, v{u1}
v_lshlrev_b32 v31, 16, v{u1}
v_and_b32 v32, s{sHI}, v{u0}
v_lshlrev_b32 v33, 16, v{u0}
v_fma_f32 v{b}, v30, v9, v{b}
v_fma_f32 v{b+1}, v31, v9, v{b+1}
v_fma_f32 v{b+2}, v32, v9, v{b+2}
v_fma_f32 v{b+3}, v33, v9, v{b+3}
v_cvt_pk_bf16_f32 v{40+2*t}, v{b}, v{b+1}
v_cvt_pk_bf16_f32 v{41+2*t}, v{b+2}, v{b+3}
buffer_store_dwordx2 v[{40+2*t}:{41+2*t}], v248, {S(SRD_WS)}, s{sCHL} offen offset:{512*t}
''')
        a.label('L_CONVDONE')
        a(f's_cmp_eq_u32 s{sMODE}, 0\ns_cbranch_scc1 L_ZOK')
        for t in range(8):
            a(f'buffer_store_dwordx2 v[{40+2*t}:{41+2*t}], v248, {S(SRD_WS)}, s{sCHL} offen offset:{512*t} sc1')
        a.label('L_ZOK')
        self.stamp('conv done')
        self.stage_lin_addr(STG3, 240)
        a(f'''
s_lshl_b32 s4, s{sJ}, 7
v_lshrrev_b32 v10, 3, v0
v_lshlrev_b32 v10, 12, v10
v_and_b32 v11, 7, v0
v_lshlrev_b32 v11, 4, v11
v_add3_u32 v10, v10, v11, s4
s_waitcnt vmcnt(0)
s_barrier
''')
        self.stamp('z stored')
        self.setflag(F1 | F2, S2)

    def phase3(self):
        a = self.a
        QF = 104
        a(f'''
v_and_b32 v7, 7, v2
v_xor_b32 v14, v3, v7
v_lshlrev_b32 v14, 4, v14
v_lshlrev_b32 v7, 9, v2
v_add_u32 v7, {STG3}, v7
v_add_u32 v14, v14, v7
s_lshl_b32 s{sT0}, s{sJ}, 6
v_lshlrev_b32 v12, 3, v3
v_add_u32 v12, s{sT0}, v12
v_mul_u32_u24 v12, 2560, v12
s_mul_i32 s{sT0}, s{sPART}, 1280
s_lshl_b32 s4, s{sCB}, 1
s_add_u32 s{sT0}, s{sT0}, s4
v_lshlrev_b32 v13, 3, v2
v_add3_u32 v12, v12, v13, s{sT0}
v_add_u32 v13, {4*2560}, v12
s_cmp_eq_u32 s{sPART}, 0
s_cbranch_scc1 L_P3Q
''')
        for r in range(8):
            for h in range(2):
                src = 208 + 2 * r + h
                a(f'v_lshlrev_b32 v{QF+4*r+2*h}, 16, v{src}\nv_and_b32 v{QF+4*r+2*h+1}, s{sHI}, v{src}')
        a.label('L_P3Q')
        self.poll(F1 | F2, S2, False)
        self.stamp('poll2')
        so = ['0', f's{sO1}', f's{sO2}', f's{sO3}']
        for i in range(4):
            a(f'buffer_load_dwordx4 v[{72+4*i}:{75+4*i}], v10, {S(SRD_WS)}, {so[i]} offen sc1')
        for i in range(4):
            a(f's_waitcnt vmcnt({3-i})')
            a(f'ds_write_b128 v{240+i}, v[{72+4*i}:{75+4*i}]')
        a('s_waitcnt lgkmcnt(0)\ns_barrier')
        self.stamp('z staged')
        for e in range(4):
            a(f'ds_read_b128 v[{88+4*e}:{91+4*e}], v14 offset:{128*e}')
        a(f's_cmp_eq_u32 s{sPART}, 0\ns_cbranch_scc1 L_P3A')
        ZF = 140
        for e in range(4):
            a(f's_waitcnt lgkmcnt({3-e})')
            for q in range(4):
                src = 88 + 4 * e + q
                a(f'v_lshlrev_b32 v{ZF+4*(2*q)+e}, 16, v{src}\nv_and_b32 v{ZF+4*(2*q+1)+e}, s{sHI}, v{src}')
        for r in range(8):
            for h in range(2):
                d = ZF + 4 * r + 2 * h; s = QF + 4 * r + 2 * h
                a(f'v_pk_mul_f32 v[{d}:{d+1}], v[{d}:{d+1}], v[{s}:{s+1}]')
            a(f'v_cvt_pk_bf16_f32 v{176+2*r}, v{ZF+4*r}, v{ZF+4*r+1}\nv_cvt_pk_bf16_f32 v{177+2*r}, v{ZF+4*r+2}, v{ZF+4*r+3}')
            self.outstore(r)
        a('s_branch L_P3E')
        a.label('L_P3A')
        a('s_waitcnt lgkmcnt(0)')
        for r in range(8):
            sel = sSELHI if (r & 1) else sSELLO
            q = r >> 1
            a(f'v_perm_b32 v{176+2*r}, v{88+4+q}, v{88+q}, s{sel}')
            a(f'v_perm_b32 v{177+2*r}, v{88+12+q}, v{88+8+q}, s{sel}')
            self.outstore(r)
        a.label('L_P3E')

    def outstore(self, r):
        b = 'v12' if r < 4 else 'v13'
        k = r % 4
        if k == 0: self.a(f'buffer_store_dwordx2 v[{176+2*r}:{177+2*r}], {b}, {S(SRD_OUT)}, 0 offen')
        elif k == 1: self.a(f'buffer_store_dwordx2 v[{176+2*r}:{177+2*r}], {b}, {S(SRD_OUT)}, 0 offen offset:2560')
        else: self.a(f'buffer_store_dwordx2 v[{176+2*r}:{177+2*r}], {b}, {S(SRD_OUT)}, s{80 + (k - 2)} offen')

    def dumplds(self):
        a = self.a
        n = self.uid()
        a(f'''
s_waitcnt vmcnt(0) lgkmcnt(0)
s_barrier
s_mul_i32 s3, s2, {LDS_TOTAL}
s_add_u32 s4, s{P['ws']}, s3
s_addc_u32 s5, s{P['ws']+1}, 0
s_add_u32 s4, s4, {16<<20}
s_addc_u32 s5, s5, 0
s_mov_b32 s6, {LDS_TOTAL}
s_mov_b32 s7, 0x20000
v_lshlrev_b32 v6, 4, v0
s_mov_b32 s3, 0
L_dump{n}:
ds_read_b128 v[8:11], v6
s_waitcnt lgkmcnt(0)
buffer_store_dwordx4 v[8:11], v6, s[4:7], 0 offen
s_waitcnt vmcnt(0)
v_add_u32 v6, 5120, v6
s_add_u32 s3, s3, 1
s_cmp_lt_u32 s3, 32
s_cbranch_scc1 L_dump{n}
s_endpgm
''')

    def finish(self):
        a = self.a
        if self.diag:
            self.stamp('out issued')
            a('s_waitcnt vmcnt(0)')
            self.stamp('end')
            a(f'''
s_mul_i32 s3, s2, 5
s_add_u32 s3, s3, s{sW}
s_lshl_b32 s3, s3, 9
s_add_u32 s4, s{P['ws']}, {8<<20}
s_addc_u32 s5, s{P['ws']+1}, 0
s_mov_b32 s6, {1<<20}
s_mov_b32 s7, 0x20000
v_lshlrev_b32 v6, 2, v1
v_add_u32 v6, s3, v6
buffer_store_dword v254, v6, s[4:7], 0 offen
buffer_store_dword v253, v6, s[4:7], 0 offen offset:256
''')
        a.label('L_END')
        a('s_endpgm')

    def build(self):
        a = self.a
        self.prologue()
        a('s_mov_b32 s80, 5120\ns_mov_b32 s81, 7680')
        ns = self.nstamp
        self.phase1_B()
        nb = self.nstamp
        a('s_branch L_P2')
        a.label('L_A1')
        a('s_mov_b32 s80, 5120\ns_mov_b32 s81, 7680')
        self.nstamp = ns
        self.phase1_A()
        assert (not self.diag) or self.nstamp == nb, (self.nstamp, nb)
        a.label('L_P2')
        self.phase2()
        if self.dump == 'p2': self.dumplds()
        self.conv()
        self.phase3()
        self.finish()
        n = a.finalize()
        return a.text(), n

HEADER = open('concat_heads__ssm_conv_s4d__ssm_conv_h3__prompt.s.ref').read().split('; Override launch')[0]

def make(diag=False, **kw):
    g = Gen(diag=diag, **kw)
    body, n = g.build()
    if diag:
        open('stampnames.txt', 'w').write('\n'.join(g.names[i] for i in sorted(g.names)))
        open('xstampnames.txt', 'w').write('\n'.join(g.xnames))
    s = HEADER
    s += '; Override launch geometry by editing the next line (default: block=256,\n'
    s += f'; @launch grid=(256,1,1) block=(320,1,1) lds={LDS_TOTAL}\n'
    s += f'''.amdgcn_target "amdgcn-amd-amdhsa--gfx950"
.text
.globl {NAME}
.p2align 8
.type {NAME},@function
{NAME}:
'''
    s += body
    s += f'''.section .rodata,"a"
.p2align 6
.amdhsa_kernel {NAME}
  .amdhsa_next_free_vgpr 256
  .amdhsa_next_free_sgpr 102
  .amdhsa_accum_offset 256
  .amdhsa_group_segment_fixed_size 0
  .amdhsa_kernarg_size 128
  .amdhsa_user_sgpr_count 2
  .amdhsa_user_sgpr_kernarg_segment_ptr 1
  .amdhsa_system_sgpr_workgroup_id_x 1
.end_amdhsa_kernel
'''
    return s, n

if __name__ == '__main__':
    ap = argparse.ArgumentParser()
    ap.add_argument('--diag', action='store_true')
    ap.add_argument('--bpart', type=int, default=1)
    ap.add_argument('--dump', default=None)
    ap.add_argument('-o', default='concat_heads__ssm_conv_s4d__ssm_conv_h3__prompt.s')
    args = ap.parse_args()
    s, n = make(diag=args.diag, bpart=args.bpart, dump=args.dump)
    open(args.o, 'w').write(s)
    print('written', args.o, 'nops inserted', n, 'lines', s.count('\n'))
```

```python
import sys, argparse
from asmgen import Asm

NAME = 'concat_heads__ssm_conv_s4d__ssm_conv_h3__prompt_kernel'
L = 2048; D = 640

KCS = 4160
KCH = 4 * KCS
UB0 = 5 * KCH
UCS = 4640
UCH = 2 * UCS
PART = UB0 + 5 * UCH
LDS_TOTAL = 163840
STG1 = UB0
STG3 = 0
KNS = 6400
KNT = 4112 - 1024
PDX = 4 * KCH
STGA = PART + 5 * KNS
DEC = LDS_TOTAL - 16
CNT = LDS_TOTAL - 32
assert KCS % 256 == 64 and UCS % 256 == 32 and KCH % 256 == 0
assert PART + 32768 <= CNT
STGA = UB0

CLUSTER_BYTES = 160 * 4096

P = dict(u=8, logA=10, Aim=12, Cre=14, Cim=16, logdt=18, Dskip=20, q=22, k=24, v=26,
         shift=28, ssmk=30, ssmD=32, out=34, dbg=36, ws=38)
SRD_A, SRD_B, SRD_Q, SRD_WS, SRD_OUT, SRD_DBG, SRD_K = 40, 44, 48, 52, 56, 60, 64
sX, sJ, sW, sXCC, sPART, sCB, sCH = 68, 69, 70, 71, 72, 73, 74
sT0 = 75
sHI = 76
sSELLO, sSELHI = 77, 78
sCHL = 79
sR2, sR3 = 80, 81
sO1, sO2, sO3 = 82, 83, 84
sFEXP, sPW, sCNT = 85, 86, 87
sMODE = 92
sIT, sNS, sSH = 93, 94, 95
F1, F2, ANN, S1, S2 = 0x08, 0x10, 0x40, 0x80, 0x20

def srd(a, reg, ptr, size, off_s=None):
    if off_s is None:
        a(f's_mov_b32 s{reg}, s{ptr}\ns_mov_b32 s{reg+1}, s{ptr+1}')
    else:
        a(f's_add_u32 s{reg}, s{ptr}, s{off_s}\ns_addc_u32 s{reg+1}, s{ptr+1}, 0')
    a(f's_mov_b32 s{reg+2}, {size}\ns_mov_b32 s{reg+3}, 0x20000')

def S(r): return f's[{r}:{r+3}]'

def interleave(*chains):
    out = []; idx = [0] * len(chains)
    while any(idx[i] < len(c) for i, c in enumerate(chains)):
        for i, c in enumerate(chains):
            if idx[i] < len(c):
                out.append(c[idx[i]]); idx[i] += 1
    return out

class Gen:
    def __init__(self, diag=False, spin=400000, bpart=0, dump=None, tfast=64, prefetch=True):
        self.a = Asm(); self.diag = diag; self.spin = spin; self.tfast = tfast
        self.nstamp = 0; self.names = {}; self.nx = 0; self.xnames = []
        self.bpart = bpart; self.dump = dump; self.prefetch = prefetch

    def track(self, t):
        self.trk = t; self.nstamp = {'A': 1, 'A4': 1, 'B': 1, 'C': 20}[t]

    def stamp(self, name=''):
        if not self.diag: return
        self.a(f's_memrealtime s[88:89]\ns_memtime s[90:91]\ns_waitcnt lgkmcnt(0)\nv_writelane_b32 v254, s88, {self.nstamp}\nv_writelane_b32 v253, s90, {self.nstamp}')
        self.names.setdefault(self.trk, {})[self.nstamp] = name
        self.nstamp += 1

    def xstamp(self, name, loop=None):
        if not self.diag: return
        if loop is None:
            return self.stamp(name)
        self.names.setdefault('X', {})[loop] = name
        self.a(f's_memrealtime s[88:89]\ns_memtime s[90:91]\ns_lshl_b32 s96, s{sIT}, 2\ns_add_u32 s96, s96, {32 + loop}\ns_waitcnt lgkmcnt(0)\ns_mov_b32 m0, s96\nv_writelane_b32 v254, s88, m0\nv_writelane_b32 v253, s90, m0')

    def uid(self): return len(self.a.ins)

    def prologue(self):
        a = self.a
        a(f'''
s_cmp_ge_u32 s2, 256
s_cbranch_scc1 L_END
s_mov_b32 s{sMODE}, 0
''')
        if self.prefetch:
            a(f'''
s_getpc_b64 s[4:5]
L_PC:
s_sub_u32 s4, s4, L_PC-{NAME}
s_subb_u32 s5, s5, 0
v_lshlrev_b32 v2, 7, v0
v_min_u32 v2, L_CODE_END-{NAME}-4, v2
v_mov_b32 v3, s5
v_add_co_u32 v2, vcc, s4, v2
v_addc_co_u32 v3, vcc, 0, v3, vcc
global_load_dword v252, v[2:3], off
''')
        a('L_START:')
        a(f'''
s_load_dwordx16 s[8:23], s[0:1], 0
s_load_dwordx16 s[24:39], s[0:1], 64
s_getreg_b32 s{sXCC}, hwreg(HW_REG_XCC_ID, 0, 4)
s_and_b32 s{sX}, s2, 7
s_lshr_b32 s{sJ}, s2, 3
s_lshr_b32 s{sPART}, s{sX}, 2
''')
        if self.bpart == 0: a(f's_xor_b32 s{sPART}, s{sPART}, 1')
        a(f'''
s_and_b32 s{sCB}, s{sX}, 3
s_mul_i32 s{sCB}, s{sCB}, 160
s_and_b32 s{sXCC}, s{sXCC}, 7
v_and_b32 v1, 63, v0
v_lshrrev_b32 v4, 6, v0
v_mul_u32_u24 v3, 1639, v0
v_readfirstlane_b32 s{sW}, v4
v_lshrrev_b32 v3, 16, v3
v_mul_u32_u24 v2, 40, v3
v_sub_u32 v2, v0, v2
s_mov_b32 s{sHI}, 0xffff0000
s_mov_b32 s{sSELLO}, 0x05040100
s_mov_b32 s{sSELHI}, 0x07060302
s_mov_b32 s{sO1}, 163840
s_mov_b32 s{sO2}, 327680
s_mov_b32 s{sO3}, 491520
s_mov_b32 s{sR2}, 5120
s_mov_b32 s{sR3}, 7680
s_mul_i32 s{sT0}, s{sJ}, 5
s_add_u32 s{sT0}, s{sT0}, s{sW}
s_add_u32 s{sCH}, s{sCB}, s{sT0}
s_lshl_b32 s{sCHL}, s{sT0}, 12
s_lshl_b32 s{sT0}, s{sJ}, 6
v_lshlrev_b32 v4, 3, v3
v_add_u32 v4, s{sT0}, v4
v_mul_u32_u24 v4, 1280, v4
s_lshl_b32 s{sT0}, s{sCB}, 1
v_lshlrev_b32 v5, 3, v2
v_add3_u32 v4, v4, v5, s{sT0}
v_add_u32 v5, 5120, v4
s_waitcnt lgkmcnt(0)
''')
        if self.diag:
            a('v_mov_b32 v254, 0\nv_mov_b32 v253, 0')
            self.trk = 'S'; self.nstamp = 0
            self.stamp('start')
        a(f's_cmp_eq_u32 s{sPART}, 0\ns_cbranch_scc1 L_A1')

    def common_srds(self):
        a = self.a
        a(f's_mul_i32 s{sT0}, s{sX}, {CLUSTER_BYTES}')
        srd(a, SRD_WS, P['ws'], CLUSTER_BYTES, sT0)
        srd(a, SRD_DBG, P['dbg'], 256)
        srd(a, SRD_OUT, P['out'], L * 2 * D * 2)

    def touch_ws(self, vtmp, vd):
        self.a(f'''
s_sub_u32 s{sT0}, 31, s{sJ}
s_lshl_b32 s{sT0}, s{sT0}, 7
s_lshl_b32 s3, s{sMODE}, 30
s_add_u32 s{sT0}, s{sT0}, s3
v_lshlrev_b32 v{vtmp}, 12, v0
v_add_u32 v{vtmp}, s{sT0}, v{vtmp}
buffer_load_dword v{vd}, v{vtmp}, {S(SRD_WS)}, 0 offen
''')
    def touch_dbg(self, vtmp, vd):
        self.a(f'''
s_lshl_b32 s{sT0}, s{sX}, 5
s_lshl_b32 s3, s{sMODE}, 30
s_add_u32 s{sT0}, s{sT0}, s3
v_mov_b32 v{vtmp}, s{sT0}
buffer_load_dword v{vd}, v{vtmp}, {S(SRD_DBG)}, 0 offen
''')

    def setflag(self, val, sval):
        a = self.a
        n = self.uid()
        a(f'''
s_lshl_b32 s{sT0}, s{sX}, 5
s_add_u32 s{sT0}, s{sT0}, s{sJ}
s_mov_b64 exec, 1
s_cmp_eq_u32 s{sMODE}, 0
s_cbranch_scc0 L_sf{n}
s_or_b32 s3, s{sXCC}, {val}
v_mov_b32 v250, s{sT0}
v_mov_b32 v247, s3
buffer_store_byte v247, v250, {S(SRD_DBG)}, 0 offen
s_branch L_rf{n}
''')
        a.label(f'L_sf{n}')
        self.own_or(sval | ANN)
        a.label(f'L_rf{n}')
        a('s_mov_b64 exec, -1')

    def own_or(self, bits):
        self.a(f'''
s_and_b32 s3, s{sT0}, 3
s_lshl_b32 s3, s3, 3
s_or_b32 s4, s{sXCC}, {bits}
s_lshl_b32 s4, s4, s3
s_and_b32 s3, s{sT0}, 0xfc
v_mov_b32 v250, s3
v_mov_b32 v247, s4
buffer_atomic_or v247, v250, {S(SRD_DBG)}, 0 offen sc1
''')

    def poll(self, fbits, sbit, first):
        a = self.a
        n = self.uid()
        M = 0x01010101
        a(f'''
s_lshl_b32 s5, s{sX}, 5
v_and_b32 v249, 7, v1
v_lshlrev_b32 v249, 2, v249
v_add_u32 v249, s5, v249
s_or_b32 s{sFEXP}, s{sXCC}, {fbits}
s_mul_i32 s{sFEXP}, s{sFEXP}, {M}
s_mov_b32 s{sCNT}, 0
s_mov_b32 s6, 0
s_cmp_eq_u32 s{sMODE}, 0
s_cbranch_scc0 L_ps{n}
''')
        a.label(f'L_pl{n}')
        a(f'''
buffer_load_dword v247, v249, {S(SRD_DBG)}, 0 offen sc1
s_add_u32 s{sCNT}, s{sCNT}, 1
s_waitcnt vmcnt(0)
v_and_b32 v247, {(fbits | 7) * M:#x}, v247
v_cmp_ne_u32 vcc, s{sFEXP}, v247
s_cmp_eq_u64 vcc, 0
s_cbranch_scc1 L_pw{n}
''')
        if first:
            a(f'''
s_cmp_lt_u32 s{sCNT}, {self.tfast}
s_cbranch_scc1 L_pl{n}
s_lshl_b32 s{sT0}, s{sX}, 5
s_add_u32 s{sT0}, s{sT0}, s{sJ}
s_mov_b64 exec, 1
''')
            self.own_or(ANN)
            a(f'''
s_mov_b64 exec, 0xff
v_mov_b32 v247, 0
buffer_atomic_or v247, v249, {S(SRD_DBG)}, 0 offen sc0 sc1
s_waitcnt vmcnt(0)
s_or_b32 s3, s{sXCC}, {ANN}
s_mul_i32 s3, s3, {M}
v_xor_b32 v247, s3, v247
v_lshrrev_b32 v250, 6, v247
v_not_b32 v250, v250
v_lshrrev_b32 v246, 1, v247
v_or_b32 v246, v246, v247
v_lshrrev_b32 v247, 2, v247
v_or_b32 v246, v246, v247
v_and_b32 v246, v246, v250
v_and_b32 v246, {M:#x}, v246
v_cmp_ne_u32 vcc, 0, v246
s_mov_b64 exec, -1
s_sleep 8
s_cmp_eq_u64 vcc, 0
s_cselect_b32 s6, 0, 1
s_cbranch_scc0 L_pw{n}
''')
        a(f'''
s_cmp_lt_u32 s{sCNT}, {self.spin}
s_cbranch_scc1 L_pl{n}
s_branch L_pw{n}
''')
        a.label(f'L_ps{n}')
        a(f'''
s_mov_b64 exec, 0xff
v_mov_b32 v247, 0
buffer_atomic_or v247, v249, {S(SRD_DBG)}, 0 offen sc0 sc1
s_add_u32 s{sCNT}, s{sCNT}, 1
s_mov_b32 s3, {sbit * M:#x}
s_waitcnt vmcnt(0)
v_and_b32 v247, s3, v247
v_cmp_ne_u32 vcc, s3, v247
s_mov_b64 exec, -1
s_cmp_eq_u64 vcc, 0
s_cbranch_scc1 L_pw{n}
s_sleep 8
s_cmp_lt_u32 s{sCNT}, {self.spin}
s_cbranch_scc1 L_ps{n}
''')
        a.label(f'L_pw{n}')
        if first:
            a(f'v_mov_b32 v250, {DEC}\nv_mov_b32 v247, s6\nds_write_b32 v250, v247')

    def check_restart(self):
        a = self.a
        n = self.uid()
        a(f'''
v_mov_b32 v250, {DEC}
ds_read_b32 v247, v250
s_waitcnt lgkmcnt(0)
v_readfirstlane_b32 s3, v247
s_cmp_eq_u32 s3, 0
s_cbranch_scc1 L_nr{n}
s_waitcnt vmcnt(0)
s_barrier
s_mov_b32 s{sMODE}, 1
s_branch L_START
''')
        a.label(f'L_nr{n}')

    def only(self, wave_s, fn):
        n = self.uid()
        self.a(f's_cmp_lg_u32 s{sW}, {wave_s}\ns_cbranch_scc1 L_only{n}')
        fn()
        self.a.label(f'L_only{n}')

    def phase1_B(self):
        a = self.a
        KR, VR, SW, W, KF, KS, CH = 10, 32, 48, 92, 108, 152, 184
        srd(a, SRD_A, P['k'], L * D * 2)
        a(f'''
v_subrev_u32 v6, {3*1280}, v4
v_mov_b32 v7, 0x40000000
v_cmp_gt_u32 vcc, {3*1280}, v4
v_cndmask_b32 v6, v6, v7, vcc
''')
        for r in range(8):
            b = 'v4' if r < 4 else 'v5'
            a(f'buffer_load_dwordx2 v[{KR+6+2*r}:{KR+7+2*r}], {b}, {S(SRD_A)}, 0 offen offset:{(r%4)*1280}')
        srd(a, SRD_K, P['shift'], D * 4 * 2)
        a(f'''
s_lshl_b32 s{sT0}, s{sCB}, 3
v_lshlrev_b32 v7, 5, v2
v_add_u32 v7, s{sT0}, v7
buffer_load_dwordx4 v[{SW}:{SW+3}], v7, {S(SRD_K)}, 0 offen
buffer_load_dwordx4 v[{SW+4}:{SW+7}], v7, {S(SRD_K)}, 0 offen offset:16
''')
        for rr in range(3):
            a(f'buffer_load_dwordx2 v[{KR+2*rr}:{KR+2*rr+1}], v6, {S(SRD_A)}, 0 offen offset:{rr*1280}')
        srd(a, SRD_B, P['v'], L * D * 2)
        for r in range(8):
            b = 'v4' if r < 4 else 'v5'
            a(f'buffer_load_dwordx2 v[{VR+2*r}:{VR+2*r+1}], {b}, {S(SRD_B)}, 0 offen offset:{(r%4)*1280}')
        self.common_srds()
        self.touch_dbg(8, 252)
        self.stage_addrs1()
        self.stamp('issued')
        a('s_waitcnt vmcnt(9)')
        self.stamp('k landed')
        for e in range(4):
            for jj in range(4):
                src = SW + 2 * e + (jj >> 1)
                if jj & 1: a(f'v_and_b32 v{W+4*jj+e}, s{sHI}, v{src}')
                else:      a(f'v_lshlrev_b32 v{W+4*jj+e}, 16, v{src}')
        for rr in range(11):
            for h in range(2):
                src = KR + 2 * rr + h
                a(f'v_lshlrev_b32 v{KF+4*rr+2*h}, 16, v{src}')
                a(f'v_and_b32 v{KF+4*rr+2*h+1}, s{sHI}, v{src}')
        ch = []
        for r in range(8):
            for h in range(2):
                d = KS + 4 * r + 2 * h
                k = lambda jj: KF + 4 * (r + 3 - jj) + 2 * h
                w = lambda jj: W + 4 * jj + 2 * h
                c = [f'v_pk_mul_f32 v[{d}:{d+1}], v[{k(0)}:{k(0)+1}], v[{w(0)}:{w(0)+1}]']
                for jj in range(1, 4):
                    c.append(f'v_pk_fma_f32 v[{d}:{d+1}], v[{k(jj)}:{k(jj)+1}], v[{w(jj)}:{w(jj)+1}], v[{d}:{d+1}]')
                ch.append(c)
        for g in range(0, 16, 4):
            for x in interleave(*ch[g:g + 4]): a(x)
        self.stamp('kshift done')
        a('s_waitcnt vmcnt(1)')
        self.stamp('v landed')
        for r in range(8):
            for h in range(2):
                src = VR + 2 * r + h
                a(f'v_lshlrev_b32 v{KF+4*r+2*h}, 16, v{src}')
                a(f'v_and_b32 v{KF+4*r+2*h+1}, s{sHI}, v{src}')
        for e in range(4):
            h = e >> 1
            if e % 2 == 0:
                for r in range(8):
                    d = KS + 4 * r + 2 * h; s = KF + 4 * r + 2 * h
                    a(f'v_pk_mul_f32 v[{d}:{d+1}], v[{d}:{d+1}], v[{s}:{s+1}]')
            for q in range(4):
                a(f'v_cvt_pk_bf16_f32 v{CH+4*e+q}, v{KS+4*(7-2*q)+e}, v{KS+4*(6-2*q)+e}')
            a(f'ds_write_b128 v236, v[{CH+4*e}:{CH+4*e+3}] offset:{128*e}')
        self.publish1()
        self.touch_ws(8, 251)
        a(f's_lshl_b32 s{sT0}, s{sCH}, 12')
        srd(a, SRD_K, P['ssmk'], 4096, sT0)
        a('v_lshlrev_b32 v8, 4, v1')
        for q in range(4):
            a(f'buffer_load_dwordx4 v[{88+4*q}:{91+4*q}], v8, {S(SRD_K)}, 0 offen offset:{1024*q}')
        srd(a, SRD_B, P['ssmD'], D * 2)
        a(f's_lshl_b32 s{sT0}, s{sCH}, 1\nv_mov_b32 v9, s{sT0}')
        a(f'buffer_load_ushort v255, v9, {S(SRD_B)}, 0 offen')
        a('s_waitcnt vmcnt(6)')
        self.stamp('st done')
        a('s_barrier')
        self.only(1, lambda: self.setflag(F1, S1))
        self.stamp('flag1')
        self.conv_setup()
        self.only(1, lambda: (self.poll(F1, S1, True), a('s_waitcnt lgkmcnt(0)')))
        a('s_barrier')
        self.stamp('poll1')
        self.uloads(1)
        self.check_restart()
        a('s_waitcnt vmcnt(4)')
        self.stamp('K landed')
        a(f'''
s_mul_i32 s{sT0}, s{sW}, {KCH}
v_lshlrev_b32 v6, 4, v1
v_add_u32 v6, s{sT0}, v6
v_lshlrev_b32 v7, 2, v1
v_add_u32 v7, s{sT0}, v7
''')
        for q in range(4):
            a(f'ds_write_b128 v6, v[{88+4*q}:{91+4*q}] offset:{3*KCS + 48 + 1024*q}')
        a('s_waitcnt lgkmcnt(0)')
        for j in range(16):
            a(f'ds_read_b32 v{88+j}, v7 offset:{3*KCS + 48 + 256*j}')
        a('s_waitcnt lgkmcnt(8)')
        for j in range(16):
            a(f'ds_read_b32 v{104+j}, v7 offset:{3*KCS + 52 + 256*j}')
        self.ucopies_one()
        a('s_waitcnt lgkmcnt(0)')
        self.kcopies(88, 104, skip3=True)
        self.stamp('K done')

    def stage_addrs1(self):
        a = self.a
        a(f'''
v_sub_u32 v6, 7, v3
v_and_b32 v7, 7, v2
v_xor_b32 v6, v6, v7
v_lshlrev_b32 v6, 4, v6
v_lshlrev_b32 v7, 9, v2
v_add_u32 v7, {STG1}, v7
v_add_u32 v236, v6, v7
''')
        self.stage_lin_addr(STG1, 240)
        a(f'''
s_sub_u32 s{sT0}, 31, s{sJ}
s_lshl_b32 s{sT0}, s{sT0}, 7
v_lshrrev_b32 v7, 3, v0
v_lshlrev_b32 v7, 12, v7
v_and_b32 v6, 7, v0
v_lshlrev_b32 v6, 4, v6
v_add3_u32 v237, v7, v6, s{sT0}
''')

    def publish1(self):
        a = self.a
        a('s_waitcnt lgkmcnt(0)')
        self.stamp('staged')
        a('s_barrier')
        for i in range(4):
            a(f'ds_read_b128 v[{220+4*i}:{223+4*i}], v{240+i}')
        so = ['0', f's{sO1}', f's{sO2}', f's{sO3}']
        for i in range(4):
            a(f's_waitcnt lgkmcnt({3-i})')
            a(f'buffer_store_dwordx4 v[{220+4*i}:{223+4*i}], v237, {S(SRD_WS)}, {so[i]} offen')
        lab = f'L_ps{self.uid()}'
        a(f's_cmp_eq_u32 s{sMODE}, 0\ns_cbranch_scc1 {lab}')
        for i in range(4):
            a(f'buffer_store_dwordx4 v[{220+4*i}:{223+4*i}], v237, {S(SRD_WS)}, {so[i]} offen sc1')
        a('s_waitcnt vmcnt(0)')
        a.label(lab)
        self.stamp('st issued')

    def stage_lin_addr(self, base, vd):
        a = self.a
        a('v_lshrrev_b32 v6, 3, v0\nv_and_b32 v7, 7, v0')
        for i in range(4):
            a(f'''
v_add_u32 v8, {40*i}, v6
v_lshrrev_b32 v9, 2, v8
v_and_b32 v9, 7, v9
v_xor_b32 v9, v9, v7
v_lshlrev_b32 v9, 4, v9
v_lshlrev_b32 v8, 7, v8
v_add_u32 v8, {base}, v8
v_add_u32 v{vd+i}, v8, v9
''')

    def uloads(self, own, chl=None, dst=72):
        a = self.a
        chl = chl or f's{sCHL}'
        a('v_lshlrev_b32 v6, 4, v1')
        for q in range(4):
            a(f'buffer_load_dwordx4 v[{dst+4*q}:{dst+4*q+3}], v6, {S(SRD_WS)}, {chl} offen offset:{1024*q} sc1')

    def uzero(self, sbase):
        self.a(f'''
v_lshlrev_b32 v7, 3, v1
v_add_u32 v7, s{sbase}, v7
v_mov_b32 v244, 0
v_mov_b32 v245, 0
s_mov_b32 exec_hi, 0x03ffffff
ds_write_b64 v7, v[244:245] offset:4104
ds_write_b64 v7, v[244:245] offset:{UCS + 4112}
s_mov_b64 exec, -1
''')
    def uwrite(self, vaddr, src):
        for q in range(4):
            b = src + 4 * q
            self.a(f'ds_write_b128 v{vaddr}, v[{b}:{b+3}] offset:{UCS + 16 + 1024*q}')
            self.a(f'ds_write_b64 v{vaddr}, v[{b}:{b+1}] offset:{8 + 1024*q}')
            self.a(f'ds_write_b64 v{vaddr}, v[{b+2}:{b+3}] offset:{16 + 1024*q}')

    def ucopies_one(self):
        a = self.a
        a(f's_mul_i32 s{sT0}, s{sW}, {UCH}\ns_add_u32 s{sT0}, s{sT0}, {UB0}')
        self.uzero(sT0)
        a(f'v_lshlrev_b32 v6, 4, v1\nv_add_u32 v6, s{sT0}, v6\ns_waitcnt vmcnt(0)')
        self.uwrite(6, 72)

    def kcopies(self, E, E1, skip3=False):
        a = self.a
        a(f'''
s_mul_i32 s{sT0}, s{sW}, {KCH}
s_mov_b32 m0, s{sT0}
v_readlane_b32 s3, v{E}, 0
v_lshlrev_b32 v6, 2, v1
v_add_u32 v6, s{sT0}, v6
s_lshl_b32 s3, s3, 16
v_mov_b32 v7, 0
v_mov_b32 v244, s3
v_cmp_eq_u32 vcc, 13, v1
v_cndmask_b32 v245, v7, v244, vcc
v_cmp_eq_u32 vcc, 12, v1
v_cndmask_b32 v244, v7, v244, vcc
s_mov_b64 exec, 0x3fff
ds_write_b32 v6, v245
ds_write_b32 v6, v7 offset:{KCS}
ds_write_b32 v6, v244 offset:{2*KCS}
s_mov_b64 exec, 0xfff
ds_write_b32 v6, v7 offset:{3*KCS}
s_mov_b64 exec, -1
''')
        for j in range(16):
            a(f'ds_write_addtid_b32 v{E+j} offset:{KCS + 4*13 + 256*j}')
            a(f'v_alignbit_b32 v{E1+j}, v{E1+j}, v{E+j}, 16')
        if not skip3:
            for j in range(16):
                a(f'ds_write_addtid_b32 v{E+j} offset:{3*KCS + 4*12 + 256*j}')
        for j in range(16):
            a(f'ds_write_addtid_b32 v{E1+j} offset:{4*14 + 256*j}')
            a(f'ds_write_addtid_b32 v{E1+j} offset:{2*KCS + 4*13 + 256*j}')

    def phase1_A(self):
        a = self.a
        PR = 26
        self.common_srds()
        a(f'v_mov_b32 v6, {CNT}\nv_mov_b32 v7, 0\nds_write_b32 v6, v7')
        a(f's_cmp_eq_u32 s{sW}, 4\ns_cbranch_scc1 L_A4')
        a(f's_lshl_b32 s{sT0}, s{sCH}, 8\nv_lshlrev_b32 v8, 2, v1')
        for i, nm in enumerate(['logA', 'Aim', 'Cre', 'Cim']):
            srd(a, 4, P[nm], 256, sT0)
            a(f'buffer_load_dword v{PR+i}, v8, s[4:7], 0 offen\ns_nop 0')
        a(f's_mul_i32 s3, s{sJ}, 5\ns_add_u32 s3, s3, s{sCB}\ns_add_u32 s3, s3, 4\ns_lshl_b32 s{sT0}, s3, 8')
        for i, nm in enumerate(['logA', 'Aim', 'Cre', 'Cim']):
            srd(a, 4, P[nm], 256, sT0)
            a(f'buffer_load_dword v{PR+6+i}, v8, s[4:7], 0 offen\ns_nop 0')
        srd(a, SRD_B, P['logdt'], D * 2)
        srd(a, SRD_Q, P['Dskip'], D * 2)
        a(f's_lshl_b32 s{sT0}, s{sCH}, 1\nv_mov_b32 v9, s{sT0}\ns_lshl_b32 s3, s3, 1\nv_mov_b32 v7, s3')
        a(f'buffer_load_ushort v{PR+4}, v9, {S(SRD_B)}, 0 offen')
        a(f'buffer_load_ushort v{PR+10}, v7, {S(SRD_B)}, 0 offen')
        a(f'buffer_load_ushort v255, v9, {S(SRD_Q)}, 0 offen')
        a('s_waitcnt lgkmcnt(0)\ns_barrier')
        self.stamp('issued')
        a('s_waitcnt vmcnt(0)')
        self.stamp('par landed')
        self.kgen(PR)
        self.stamp('K done')
        self.conv_setup()
        a('s_waitcnt lgkmcnt(0)\ns_barrier')
        self.stamp('B1')
        self.check_restart()
        a('s_branch L_A5')
        a.label('L_A4')
        self.track('A4')
        srd(a, SRD_Q, P['Dskip'], D * 2)
        a(f's_lshl_b32 s{sT0}, s{sCH}, 1\nv_mov_b32 v9, s{sT0}')
        a(f'buffer_load_ushort v255, v9, {S(SRD_Q)}, 0 offen')
        self.touch_dbg(8, 252)
        a('s_waitcnt lgkmcnt(0)\ns_barrier')
        self.stamp('issued')
        a('s_waitcnt vmcnt(0)')
        self.stamp('par landed')
        self.upublish_A()
        self.stamp('u published')
        self.setflag(F1, S1)
        self.stamp('flag1')
        self.poll(F1, S1, True)
        self.stamp('poll1')
        self.uall_A()
        self.stamp('u copies')
        self.conv_setup()
        a('s_waitcnt lgkmcnt(0)\ns_barrier')
        self.stamp('B1')
        self.check_restart()
        a.label('L_A5')

    def upublish_A(self):
        a = self.a
        srd(a, SRD_A, P['u'], L * D * 2)
        UR = 10
        a(f'''
v_and_b32 v2, 15, v1
v_lshrrev_b32 v3, 4, v1
s_lshl_b32 s{sT0}, s{sJ}, 6
v_lshlrev_b32 v6, 3, v3
v_add_u32 v6, s{sT0}, v6
v_mul_u32_u24 v6, 1280, v6
s_lshl_b32 s{sT0}, s{sCB}, 1
v_lshlrev_b32 v7, 3, v2
v_add3_u32 v6, v6, v7, s{sT0}
v_lshrrev_b32 v7, 3, v2
v_mul_u32_u24 v7, {32*1280 - 64}, v7
v_add3_u32 v7, v7, v6, 0
v_add_u32 v7, 256, v7
''')
        for p in range(5):
            base = 6 if p < 4 else 7
            off = 0 if p == 4 else (p & 1) * 32 * 1280 + (p >> 1) * 128
            a(f'v_add_u32 v8, {off}, v{base}\nv_add_u32 v9, 5120, v8')
            for r in range(8):
                b = 'v8' if r < 4 else 'v9'
                a(f'buffer_load_dwordx2 v[{UR+16*p+2*r}:{UR+16*p+2*r+1}], {b}, {S(SRD_A)}, 0 offen offset:{(r%4)*1280}')
        a(f'''
v_sub_u32 v90, 3, v3
v_and_b32 v91, 7, v2
v_lshlrev_b32 v92, 8, v2
v_add_u32 v92, {STGA}, v92
''')
        for e in range(4):
            a(f'''
v_or_b32 v93, {(e & 1) << 2}, v90
v_xor_b32 v93, v93, v91
v_lshlrev_b32 v93, 4, v93
v_add_u32 v93, v93, v92
v_add_u32 v{96+e}, {(e >> 1) * 128}, v93
''')
        a('v_lshrrev_b32 v90, 2, v1\nv_and_b32 v91, 3, v1')
        for i in range(4):
            a(f'''
v_add_u32 v92, {16*i}, v90
v_and_b32 v93, 1, v92
v_lshlrev_b32 v93, 2, v93
v_or_b32 v93, v93, v91
v_lshrrev_b32 v94, 2, v92
v_and_b32 v94, 7, v94
v_xor_b32 v93, v93, v94
v_lshlrev_b32 v93, 4, v93
v_lshrrev_b32 v92, 1, v92
v_lshlrev_b32 v92, 7, v92
v_add_u32 v92, {STGA}, v92
v_add_u32 v{100+i}, v92, v93
''')
        a(f'''
s_lshl_b32 s{sT0}, s{sJ}, 7
s_sub_u32 s{sT0}, 3968, s{sT0}
v_lshlrev_b32 v104, 12, v90
v_lshlrev_b32 v92, 4, v91
v_add3_u32 v104, v104, v92, s{sT0}
''')
        SEL = [sSELLO, sSELHI]
        for p in range(5):
            a(f's_waitcnt vmcnt({8*(4-p) + 4*p if False else 8*(4-p)})' if p == 0 else f's_waitcnt vmcnt({8*(4-p) + 4*p})')
            U = UR + 16 * p
            for e in range(4):
                for q in range(4):
                    lo = U + 2 * (7 - 2 * q) + (e >> 1); hi = U + 2 * (6 - 2 * q) + (e >> 1)
                    a(f'v_perm_b32 v{108+4*e+q}, v{hi}, v{lo}, s{SEL[e & 1]}')
                a(f'ds_write_b128 v{96+e}, v[{108+4*e}:{111+4*e}]')
            a('s_waitcnt lgkmcnt(0)')
            for i in range(4):
                a(f'ds_read_b128 v[{124+4*i}:{127+4*i}], v{100+i}')
            for i in range(4):
                if p < 4:
                    off = (64 * (p >> 1) + 16 * i) * 4096 + 64 * (1 - (p & 1))
                else:
                    off = (128 + 16 * (i & 1)) * 4096 + 64 * (1 - (i >> 1))
                a(f's_mov_b32 s3, {off}')
                a(f's_waitcnt lgkmcnt({3-i})')
                a(f'buffer_store_dwordx4 v[{124+4*i}:{127+4*i}], v104, {S(SRD_WS)}, s3 offen')
                n = self.uid()
                a(f's_cmp_eq_u32 s{sMODE}, 0\ns_cbranch_scc1 L_us{n}')
                a(f'buffer_store_dwordx4 v[{124+4*i}:{127+4*i}], v104, {S(SRD_WS)}, s3 offen sc1\ns_waitcnt vmcnt(0)')
                a.label(f'L_us{n}')
        a('s_waitcnt vmcnt(0)')

    def uall_A(self):
        a = self.a
        a(f's_mul_i32 s3, s{sJ}, 5\ns_lshl_b32 s3, s3, 12')
        for c in range(5):
            a(f's_add_u32 s4, s3, {4096*c}')
            self.uloads(False, 's4', 10 + 16 * c)
        for c in range(5):
            a(f's_mov_b32 s{sT0}, {UB0 + c*UCH}')
            self.uzero(sT0)
            a(f'v_lshlrev_b32 v6, 4, v1\nv_add_u32 v6, {UB0 + c*UCH}, v6\ns_waitcnt vmcnt({4*(4-c)})')
            self.uwrite(6, 10 + 16 * c)

    def ktask(self, PW, ACC):
        a = self.a
        LOG2E = 0x3fb8aa3b; INV2PI = 0x3e22f983
        AL, OM, DT, C0 = 52, 53, 54, 56
        E1, E2, E4, E8, E128, E256, E512, E1024, E2048 = 64, 66, 68, 70, 72, 74, 76, 78, 80
        FA, FB, G0A, G0B, G1A, G1B, G1C, G1D, G2A, G2B = 82, 84, 86, 88, 90, 92, 94, 96, 98, 100
        TC = 104
        WA = 112
        RA = 116
        OPB = 120
        unp = lambda d, s: [f'v_lshlrev_b32 v{d}, s{sSH}, v{s}', f'v_and_b32 v{d}, s{sHI}, v{d}']
        def cm(d, x, y):
            return [f'v_pk_mul_f32 v[{d}:{d+1}], v[{x}:{x+1}], v[{y}:{y+1}] op_sel_hi:[0,1]',
                    f'v_pk_fma_f32 v[{d}:{d+1}], v[{x}:{x+1}], v[{y}:{y+1}], v[{d}:{d+1}] op_sel:[1,1,0] op_sel_hi:[1,0,1] neg_lo:[1,0,0]']
        c_dt = [f'v_lshlrev_b32 v{DT}, 16, v{PW+4}', f'v_mul_f32 v{DT}, {LOG2E:#x}, v{DT}', f'v_exp_f32 v{DT}, v{DT}',
                f'v_cvt_pk_bf16_f32 v{DT}, v{DT}, v{DT}', f'v_and_b32 v{DT}, s{sHI}, v{DT}', f'v_add_f32 v{DT+1}, v{DT}, v{DT}']
        c_al = unp(AL, PW) + [f'v_mul_f32 v{AL}, {LOG2E:#x}, v{AL}', f'v_exp_f32 v{AL}, v{AL}',
                f'v_cvt_pk_bf16_f32 v{AL}, v{AL}, v{AL}', f'v_and_b32 v{AL}, s{sHI}, v{AL}']
        c_om = unp(OM, PW + 1) + unp(C0, PW + 2) + unp(C0 + 1, PW + 3)
        for x in interleave(c_dt, c_al, c_om): a(x)
        a(f'''
v_mul_f32 v{AL}, v{AL}, v{DT}
v_mul_f32 v{OM}, v{OM}, v{DT}
v_mul_f32 v{C0}, v{C0}, v{DT+1}
v_mul_f32 v{AL}, {(LOG2E | 0x80000000):#x}, v{AL}
v_mul_f32 v{OM}, {INV2PI:#x}, v{OM}
v_mul_f32 v{C0+1}, v{C0+1}, v{DT+1}
''')
        def cexp(d, t, scale):
            c = []
            if scale is None:
                c += [f'v_exp_f32 v{t}, v{AL}', f'v_fract_f32 v{t+1}, v{OM}']
            else:
                c += [f'v_mul_f32 v{t}, {scale:#x}, v{AL}', f'v_mul_f32 v{t+1}, {scale:#x}, v{OM}', f'v_exp_f32 v{t}, v{t}', f'v_fract_f32 v{t+1}, v{t+1}']
            c += [f'v_cos_f32 v{d}, v{t+1}', f'v_sin_f32 v{d+1}, v{t+1}', f'v_mul_f32 v{d}, v{t}, v{d}', f'v_mul_f32 v{d+1}, v{t}, v{d+1}']
            return c
        for x in interleave(cexp(E8, 58, 0x41000000), cexp(E128, 60, 0x43000000), cexp(E1, 62, None)): a(x)
        self.xstamp('kt setup', loop=0)
        p1 = cm(E2, E1, E1) + cm(E4, E2, E2)
        p2 = cm(E256, E128, E128) + cm(E512, E256, E256) + cm(E1024, E512, E512) + cm(E2048, E1024, E1024)
        p3 = cm(G0B, C0, E128)
        heads = cm(G1A, C0, E256) if False else []
        for x in interleave(p1, p2): a(x)
        for x in interleave(cm(G1A, C0, E256), cm(G2A, C0, E1024)): a(x)
        a(f'v_mov_b32 v{FA}, 1.0\nv_mov_b32 v{FA+1}, 0')
        f, g0, g1, g2 = FA, C0, G1A, G2A
        g1head = G1A; g1even = None; g1odd = None
        def cvt(t, x, neg=False): return f'v_cvt_pk_bf16_f32 v{t}, v{x}, {"-" if neg else ""}v{x+1}'
        for i in range(16):
            chains = []
            if i > 0:
                nf = FB if f == FA else FA
                chains.append(cm(nf, f, E8) if i > 1 else [f'v_mov_b32 v{nf}, v{E8}', f'v_mov_b32 v{nf+1}, v{E8+1}']); f = nf
                if i == 8: ng = G0A; chains.append(cm(ng, C0, E128))
                else:      ng = G0A if g0 != G0A else G0B; chains.append(cm(ng, g0, E1))
                g0 = ng
                if i in (1, 2, 3, 5, 6, 7):
                    ng = G1B if g1 != G1B else G1C; chains.append(cm(ng, g1, E2))
                elif i == 4: ng = G1D; chains.append(cm(ng, G1A, E128))
                elif i == 8: ng = G1A; chains.append(cm(ng, C0, E512)); g1even = ng
                elif i == 9: ng = G1B; chains.append(cm(ng, g1even, E4)); g1odd = ng
                elif i % 2 == 0: ng = G1C if g1even == G1A else G1A; chains.append(cm(ng, g1even, E128)); g1even = ng
                else: ng = G1D if g1odd == G1B else G1B; chains.append(cm(ng, g1odd, E128)); g1odd = ng
                g1 = ng
                if i < 8: ng = G2B if g2 == G2A else G2A; chains.append(cm(ng, g2, E128)); g2 = ng
                elif i == 8: ng = G2B if g2 == G2A else G2A; chains.append(cm(ng, C0, E2048)); g2 = ng
            wa = WA + (i & 1); t = TC + 4 * (i & 1)
            chains.append([f'v_xor_b32 v{wa}, {16*i}, v{WA+2}'])
            for x in interleave(*chains): a(x)
            a(cvt(t, f, True)); a(cvt(t + 1, g0)); a(cvt(t + 2, g1))
            if i <= 8: a(cvt(t + 3, g2))
            a(f'ds_write2st64_b32 v{wa}, v{t}, v{t+1} offset0:{i} offset1:{16+i}')
            if i <= 8: a(f'ds_write2st64_b32 v{wa}, v{t+2}, v{t+3} offset0:{32+i} offset1:{48+i}')
            else:      a(f'ds_write_b32 v{wa}, v{t+2} offset:{(32+i)*256}')
        self.xstamp('kt values', loop=1)
        a('s_waitcnt lgkmcnt(0)')
        for ks in range(4):
            a(f'ds_read_b128 v[{OPB+4*ks}:{OPB+4*ks+3}], v{RA+ks}')
        for tile in range(3):
            for ks in range(4):
                o = OPB + 16 + 16 * tile + 4 * ks
                a(f'ds_read_b128 v[{o}:{o+3}], v{RA+ks} offset:{4096*(tile+1)}')
        a('s_waitcnt lgkmcnt(0)')
        for ks in range(4):
            for tile in range(3):
                o = OPB + 16 + 16 * tile + 4 * ks
                a(f'v_mfma_f32_16x16x32_bf16 v[{ACC+4*tile}:{ACC+4*tile+3}], v[{o}:{o+3}], v[{OPB+4*ks}:{OPB+4*ks+3}], v[{ACC+4*tile}:{ACC+4*tile+3}]')
        self.xstamp('kt mfma', loop=2)

    def kexpand(self, ACC, sbase):
        a = self.a
        T32 = KNT
        a(f'''
v_and_b32 v6, 15, v1
v_lshrrev_b32 v7, 4, v1
v_and_b32 v8, 1, v7
v_lshlrev_b32 v8, 3, v8
v_lshrrev_b32 v9, 1, v7
v_lshlrev_b32 v9, 8, v9
v_lshlrev_b32 v10, 4, v6
v_add3_u32 v8, v8, v9, v10
v_add_u32 v8, s{sbase}, v8
v_lshlrev_b32 v9, 6, v7
v_lshlrev_b32 v10, 2, v6
v_add_u32 v10, v10, v9
v_lshlrev_b32 v11, 1, v6
v_add_u32 v11, v11, v9
v_cmp_gt_u32 vcc, 2, v7
v_cndmask_b32 v10, v11, v10, vcc
v_mov_b32 v11, 128
v_mov_b32 v12, 8
v_cndmask_b32 v11, v11, v12, vcc
v_lshlrev_b32 v10, 2, v10
v_add_u32 v10, s{sbase}, v10
v_add_u32 v11, v10, v11
v_add_u32 v12, v9, v6
v_lshlrev_b32 v12, 2, v12
v_add_u32 v12, s{sbase}, v12
v_and_b32 v13, 31, v1
v_lshlrev_b32 v27, 4, v13
v_add_u32 v27, s{sbase}, v27
v_lshlrev_b32 v28, 3, v1
v_add_u32 v28, s{sbase}, v28
v_lshlrev_b32 v29, 2, v1
v_add_u32 v29, s{sbase}, v29
v_lshlrev_b32 v30, 4, v1
v_add_u32 v30, s{sbase}, v30
s_mov_b32 s3, 0xffff
''')
        a(f'v_cvt_pk_bf16_f32 v14, v{ACC}, v{ACC+1}\nv_cvt_pk_bf16_f32 v15, v{ACC+2}, v{ACC+3}')
        for r in range(4): a(f'v_cvt_pk_bf16_f32 v{16+r}, v{ACC+4+r}, v{ACC+4+r}')
        for r in range(4): a(f'v_cvt_pk_bf16_f32 v{20+r}, v{ACC+8+r}, v{ACC+8+r}')
        a(f'ds_write_b64 v10, v[16:17] offset:{T32 + 4*256}\nds_write_b64 v11, v[18:19] offset:{T32 + 4*256}')
        for r in range(4): a(f'ds_write_b32 v12, v{20+r} offset:{T32 + 4*512 + 64*r}')
        a('ds_write_b64 v8, v[14:15]')
        a(f'''
v_and_b32 v13, 1, v1
v_cmp_eq_u32 vcc, 1, v13
s_waitcnt lgkmcnt(0)
ds_read_b128 v[32:35], v27 offset:{T32 + 4*256}
ds_read_b32 v36, v27 offset:{T32 + 4*256 + 16}
ds_read_b64 v[60:61], v28 offset:{T32 + 4*384}
ds_read_b32 v62, v28 offset:{T32 + 4*384 + 8}
ds_read_b32 v64, v29 offset:{T32 + 4*512}
ds_read_b32 v65, v29 offset:{T32 + 4*513}
ds_read_b32 v66, v29 offset:{T32 + 4*576}
ds_read_b32 v67, v29 offset:{T32 + 4*577}
s_waitcnt lgkmcnt(0)
v_bfi_b32 v33, s3, v33, v34
v_bfi_b32 v35, s3, v35, v36
v_mov_b32 v68, v60
v_bfi_b32 v69, s3, v60, v61
v_mov_b32 v70, v61
v_mov_b32 v71, v62
ds_write_b128 v27, v[32:35] offset:{16*32}
ds_write_b128 v30, v[68:71] offset:{16*64}
v_mov_b32 v72, v64
v_mov_b32 v73, v64
v_cndmask_b32 v74, v64, v65, vcc
v_bfi_b32 v74, s3, v74, v65
v_mov_b32 v75, v65
v_mov_b32 v76, v66
v_mov_b32 v77, v66
v_cndmask_b32 v78, v66, v67, vcc
v_bfi_b32 v78, s3, v78, v67
v_mov_b32 v79, v67
ds_write_b128 v30, v[72:75] offset:{16*128}
ds_write_b128 v30, v[76:79] offset:{16*192}
s_waitcnt lgkmcnt(0)
''')
        for j in range(16):
            a(f'ds_read_b32 v{100+j}, v29 offset:{256*j}')
        a('s_waitcnt lgkmcnt(8)')
        for j in range(16):
            a(f'ds_read_b32 v{116+j}, v29 offset:{256*j + 4}')
        a('s_waitcnt lgkmcnt(0)')

    def kgen(self, PR):
        a = self.a
        ACC, PW = 40, 184
        n = self.uid()
        a(f'''
s_mul_i32 s{sT0}, s{sW}, {KCH}
v_lshlrev_b32 v114, 2, v1
v_add_u32 v114, s{sT0}, v114
v_and_b32 v6, 15, v1
v_lshrrev_b32 v7, 4, v1
v_lshlrev_b32 v8, 8, v6
v_add_u32 v8, s{sT0}, v8
''')
        for ks in range(4):
            a(f'v_or_b32 v9, {4*ks}, v7\nv_xor_b32 v9, v9, v6\nv_lshlrev_b32 v9, 4, v9\nv_add_u32 v{116+ks}, v8, v9')
        for r in range(12): a(f'v_mov_b32 v{ACC+r}, 0')
        a(f'''
s_sub_u32 s3, s{sW}, 1
s_cmp_lt_u32 s3, 2
s_cselect_b32 s{sNS}, 1, 0
s_mov_b32 s{sIT}, 0
''')
        a.label(f'L_KL{n}')
        a(f'''
s_cmp_lt_u32 s{sIT}, s{sNS}
s_cbranch_scc0 L_KO{n}
s_sub_u32 s3, 2, s{sW}
s_lshl_b32 s{sSH}, s3, 4
''')
        for i in range(5): a(f'v_mov_b32 v{PW+i}, v{PR+6+i}')
        a(f's_branch L_KR{n}')
        a.label(f'L_KO{n}')
        a(f'''
s_sub_u32 s3, s{sIT}, s{sNS}
s_sub_u32 s3, 1, s3
s_lshl_b32 s{sSH}, s3, 4
''')
        for i in range(5): a(f'v_mov_b32 v{PW+i}, v{PR+i}')
        a.label(f'L_KR{n}')
        self.ktask(PW, ACC)
        a(f'''
s_cmp_lt_u32 s{sIT}, s{sNS}
s_cbranch_scc0 L_KN{n}
s_sub_u32 s3, s{sW}, 1
s_mul_i32 s3, s3, 3072
s_add_u32 s3, s3, {PDX}
v_lshlrev_b32 v6, 4, v1
v_add_u32 v6, s3, v6
s_nop 7
''')
        for t in range(3):
            a(f'ds_write_b128 v6, v[{ACC+4*t}:{ACC+4*t+3}] offset:{1024*t}')
        a(f'v_mov_b32 v6, {CNT}\nv_mov_b32 v7, 1\ns_waitcnt lgkmcnt(0)\ns_mov_b64 exec, 1\nds_add_u32 v6, v7\ns_mov_b64 exec, -1')
        for r in range(12): a(f'v_mov_b32 v{ACC+r}, 0')
        a.label(f'L_KN{n}')
        a(f'''
s_add_u32 s{sIT}, s{sIT}, 1
s_sub_u32 s3, s{sIT}, s{sNS}
s_cmp_lt_i32 s3, 2
s_cbranch_scc1 L_KL{n}
s_nop 7
''')
        a(f's_mul_i32 s4, s{sW}, {KNS}\ns_add_u32 s4, s4, {PART}')
        self.kexpand(ACC, 4)
        self.xstamp('expanded')
        self.kcopies(100, 116)
        self.xstamp('copies')
        a(f's_cmp_lg_u32 s{sW}, 3\ns_cbranch_scc1 L_KE{n}')
        a(f'v_mov_b32 v6, {CNT}')
        a.label(f'L_KW{n}')
        a(f'ds_read_b32 v7, v6\ns_waitcnt lgkmcnt(0)\nv_readfirstlane_b32 s3, v7\ns_cmp_lt_u32 s3, 2\ns_cbranch_scc1 L_KW{n}')
        a(f'v_lshlrev_b32 v6, 4, v1\nv_add_u32 v6, {PDX}, v6')
        for t in range(6):
            a(f'ds_read_b128 v[{100+4*t}:{103+4*t}], v6 offset:{1024*t}')
        a('s_waitcnt lgkmcnt(0)')
        for r in range(12):
            a(f'v_add_f32 v{ACC+r}, v{100+r}, v{112+r}')
        a(f's_mov_b32 s4, {PART + 4*KNS}')
        self.kexpand(ACC, 4)
        a(f's_mov_b32 s{sW}, 4')
        self.kcopies(100, 116)
        a(f's_mov_b32 s{sW}, 3')
        a.label(f'L_KE{n}')

    def conv_setup(self):
        a = self.a
        vKA, vUB, vKA4, vUB4 = 200, 201, 202, 203
        a(f'''
v_and_b32 v6, 15, v1
v_lshrrev_b32 v7, 4, v1
v_and_b32 v8, 3, v6
v_mul_u32_u24 v8, {KCS}, v8
v_lshrrev_b32 v9, 2, v6
v_add_u32 v9, v9, v7
v_lshlrev_b32 v9, 4, v9
v_add_u32 v8, v8, v9
s_mul_i32 s{sT0}, s{sW}, {KCH}
v_add_u32 v{vKA}, s{sT0}, v8
s_lshl_b32 s{sT0}, s{sW}, 7
s_add_u32 s{sT0}, s{sT0}, {4*KCH}
v_add_u32 v{vKA4}, s{sT0}, v8
v_and_b32 v8, 1, v6
v_mul_u32_u24 v8, {UCS}, v8
v_lshrrev_b32 v9, 1, v6
v_lshlrev_b32 v9, 6, v9
v_sub_u32 v8, v8, v9
v_lshlrev_b32 v9, 4, v7
v_add_u32 v8, v8, v9
v_add_u32 v8, {4048 - 3584 + UB0}, v8
s_mul_i32 s{sT0}, s{sW}, {UCH}
v_add_u32 v{vUB}, s{sT0}, v8
s_lshl_b32 s{sT0}, s{sW}, 7
s_add_u32 s{sT0}, s{sT0}, {4*UCH}
v_add_u32 v{vUB4}, s{sT0}, v8
v_and_b32 v8, 1, v6
v_lshlrev_b32 v8, 3, v8
v_lshrrev_b32 v9, 1, v6
v_lshlrev_b32 v9, 6, v9
v_add_u32 v8, v8, v9
v_lshlrev_b32 v9, 4, v7
v_add_u32 v248, v8, v9
v_lshlrev_b32 v246, 4, v1
s_lshl_b32 s{sT0}, s{sW}, 13
s_add_u32 s{sT0}, s{sT0}, {PART}
v_add_u32 v246, s{sT0}, v246
''')
        for r in range(64): a(f'v_mov_b32 v{8+r}, 0')

    def conv_diag(self):
        a = self.a
        AD = 204
        a(f'''
v_and_b32 v6, 15, v1
v_lshrrev_b32 v7, 4, v1
v_lshrrev_b32 v240, 2, v6
v_sub_u32 v240, 3, v240
v_cmp_eq_u32 vcc, v240, v7
v_and_b32 v241, 0xffff, v255
v_cndmask_b32 v241, 0, v241, vcc
v_and_b32 v240, 3, v6
v_sub_u32 v240, 3, v240
v_and_b32 v242, 1, v240
v_lshlrev_b32 v242, 4, v242
v_lshlrev_b32 v241, v242, v241
v_cmp_gt_u32 vcc, 2, v240
v_cndmask_b32 v{AD}, 0, v241, vcc
v_cndmask_b32 v{AD+1}, v241, 0, vcc
v_mov_b32 v{AD+2}, 0
v_mov_b32 v{AD+3}, 0
''')

    def phase2_end(self):
        a = self.a
        self.conv_diag()
        a(f's_cmp_eq_u32 s{sPART}, 0\ns_cbranch_scc1 L_NOQ')
        srd(a, SRD_Q, P['q'], L * D * 2)
        for r in range(8):
            b = 'v4' if r < 4 else 'v5'
            a(f'buffer_load_dwordx2 v[{208+2*r}:{209+2*r}], {b}, {S(SRD_Q)}, 0 offen offset:{(r%4)*1280}')
        a('s_waitcnt lgkmcnt(0)\ns_barrier')
        a.label('L_NOQ')
        self.stamp('copies')

    def conv(self):
        a = self.a
        ACC, ACC4 = 8, 40
        AT = [72, 136]; BT = [104, 168]
        vKA, vUB, vKA4, vUB4, AD = 200, 201, 202, 203, 204
        a(f's_cmp_eq_u32 s{sW}, 4\ns_cbranch_scc1 L_W4')
        tasks = [('4', 0), ('4', 1)] + [('o', i) for i in range(8)]
        def loads(st, task):
            kind, i = task
            ka, ub = (vKA4, vUB4) if kind == '4' else (vKA, vUB)
            out = []
            for jd in range(8):
                out.append(f'ds_read_b128 v[{AT[st]+4*jd}:{AT[st]+4*jd+3}], v{ka} offset:{512*jd+64*i}')
                out.append(f'ds_read_b128 v[{BT[st]+4*jd}:{BT[st]+4*jd+3}], v{ub} offset:{3584-512*jd+64*i}')
            return out
        def mf(acc, t, A, B):
            return f'v_mfma_f32_16x16x32_bf16 v[{acc+4*t}:{acc+4*t+3}], v[{A}:{A+3}], v[{B}:{B+3}], v[{acc+4*t}:{acc+4*t+3}]'
        def mfmas(st, task):
            kind, i = task
            acc = ACC4 if kind == '4' else ACC
            prs = [(j, d) for j in range(8) for d in range(8) if j + d <= 7]
            prs.sort(key=lambda p: (max(p), p[0]))
            out = [((j, d), mf(acc, j + d, AT[st] + 4 * j, BT[st] + 4 * d)) for (j, d) in prs]
            if kind == 'o' and i == 0:
                out += [((0, d), mf(acc, d, AD, BT[st] + 4 * d)) for d in range(8)]
            return out
        L0 = loads(0, tasks[0])
        for l in L0: a(l)
        for n, task in enumerate(tasks[:-1]):
            st = n & 1
            M = mfmas(st, task)
            side = loads(st ^ 1, tasks[n + 1])
            if n == 2:
                side += [f'ds_write_b128 v246, v[{ACC4+4*t}:{ACC4+4*t+3}] offset:{1024*t}' for t in range(8)]
            if n == 0:
                done = -1; si = 0
                for m, ((j, d), x) in enumerate(M):
                    need = max(j, d)
                    if need > done and done < 4:
                        a(f's_waitcnt lgkmcnt({14 - 2*need if need < 4 else 0})')
                        done = need
                    a(x)
                    if need >= 4 and si < len(side):
                        a(side[si]); si += 1
                while si < len(side): a(side[si]); si += 1
                continue
            a('s_waitcnt lgkmcnt(0)')
            if n == 3: a('s_barrier')
            si = 0
            for m, (_, x) in enumerate(M):
                a(x)
                if si < len(side) and (m % 2 == 0 or len(side) > 18):
                    a(side[si]); si += 1
            while si < len(side): a(side[si]); si += 1
        st = (len(tasks) - 1) & 1
        a('s_waitcnt lgkmcnt(0)')
        def emit_store(t):
            c = 40 + 2 * t
            a(f'v_cvt_pk_bf16_f32 v{c}, v{ACC+4*t}, v{ACC+4*t+1}\nv_cvt_pk_bf16_f32 v{c+1}, v{ACC+4*t+2}, v{ACC+4*t+3}')
            a(f'buffer_store_dwordx2 v[{c}:{c+1}], v248, {S(SRD_WS)}, s{sCHL} offen offset:{512*t}')
        for t in range(7, -1, -1):
            for j in range(t + 1):
                a(mf(ACC, t, AT[st] + 4 * j, BT[st] + 4 * (t - j)))
            if t + 2 <= 7: emit_store(t + 2)
        emit_store(1); emit_store(0)
        a('s_branch L_CONVDONE')
        a.label('L_W4')
        a(f'''
s_setprio 3
v_sub_u32 v8, {UB0 + 4*UCH + 4096 - 3584}, v248
v_lshlrev_b32 v6, 4, v1
v_add_u32 v6, {PART}, v6
v_lshlrev_b32 v9, 16, v255
''')
        for t in range(8):
            a(f'ds_read_b64 v[{12+2*t}:{13+2*t}], v8 offset:{3584 - 512*t}')
        a('s_barrier')
        for t in range(8):
            for w in range(4):
                a(f'ds_read_b128 v[{72+16*t+4*w}:{75+16*t+4*w}], v6 offset:{8192*w + 1024*t}')
        a('s_waitcnt lgkmcnt(0)')
        for t in range(8):
            b = 72 + 16 * t
            for r in range(0, 4, 2):
                a(f'v_pk_add_f32 v[{b+r}:{b+r+1}], v[{b+r}:{b+r+1}], v[{b+4+r}:{b+5+r}]')
                a(f'v_pk_add_f32 v[{b+8+r}:{b+9+r}], v[{b+8+r}:{b+9+r}], v[{b+12+r}:{b+13+r}]')
            for r in range(0, 4, 2):
                a(f'v_pk_add_f32 v[{b+r}:{b+r+1}], v[{b+r}:{b+r+1}], v[{b+8+r}:{b+9+r}]')
            u0, u1 = 12 + 2 * t, 13 + 2 * t
            a(f'''
v_and_b32 v30, s{sHI}, v{u1}
v_lshlrev_b32 v31, 16, v{u1}
v_and_b32 v32, s{sHI}, v{u0}
v_lshlrev_b32 v33, 16, v{u0}
v_fma_f32 v{b}, v30, v9, v{b}
v_fma_f32 v{b+1}, v31, v9, v{b+1}
v_fma_f32 v{b+2}, v32, v9, v{b+2}
v_fma_f32 v{b+3}, v33, v9, v{b+3}
v_cvt_pk_bf16_f32 v{40+2*t}, v{b}, v{b+1}
v_cvt_pk_bf16_f32 v{41+2*t}, v{b+2}, v{b+3}
buffer_store_dwordx2 v[{40+2*t}:{41+2*t}], v248, {S(SRD_WS)}, s{sCHL} offen offset:{512*t}
''')
        a('s_setprio 0')
        a.label('L_CONVDONE')
        a(f's_cmp_eq_u32 s{sMODE}, 0\ns_cbranch_scc1 L_ZOK')
        for t in range(8):
            a(f'buffer_store_dwordx2 v[{40+2*t}:{41+2*t}], v248, {S(SRD_WS)}, s{sCHL} offen offset:{512*t} sc1')
        a.label('L_ZOK')
        self.stamp('conv done')
        a('s_waitcnt vmcnt(0)\ns_barrier')
        self.stamp('z stored')
        self.only(4, lambda: self.setflag(F1 | F2, S2))

    def phase3(self):
        a = self.a
        QF = 104
        a(f'''
v_mul_u32_u24 v3, 1639, v0
v_lshrrev_b32 v3, 16, v3
v_mul_u32_u24 v2, 40, v3
v_sub_u32 v2, v0, v2
''')
        self.stage_lin_addr(STG3, 240)
        a(f'''
s_lshl_b32 s4, s{sJ}, 7
v_lshrrev_b32 v10, 3, v0
v_lshlrev_b32 v10, 12, v10
v_and_b32 v11, 7, v0
v_lshlrev_b32 v11, 4, v11
v_add3_u32 v10, v10, v11, s4
v_and_b32 v7, 7, v2
v_xor_b32 v14, v3, v7
v_lshlrev_b32 v14, 4, v14
v_lshlrev_b32 v7, 9, v2
v_add_u32 v7, {STG3}, v7
v_add_u32 v14, v14, v7
s_lshl_b32 s{sT0}, s{sJ}, 6
v_lshlrev_b32 v12, 3, v3
v_add_u32 v12, s{sT0}, v12
v_mul_u32_u24 v12, 2560, v12
s_mul_i32 s{sT0}, s{sPART}, 1280
s_lshl_b32 s4, s{sCB}, 1
s_add_u32 s{sT0}, s{sT0}, s4
v_lshlrev_b32 v13, 3, v2
v_add3_u32 v12, v12, v13, s{sT0}
v_add_u32 v13, {4*2560}, v12
s_cmp_eq_u32 s{sPART}, 0
s_cbranch_scc1 L_P3Q
''')
        for r in range(8):
            for h in range(2):
                src = 208 + 2 * r + h
                a(f'v_lshlrev_b32 v{QF+4*r+2*h}, 16, v{src}\nv_and_b32 v{QF+4*r+2*h+1}, s{sHI}, v{src}')
        a.label('L_P3Q')
        self.only(4, lambda: self.poll(F1 | F2, S2, False))
        a('s_barrier')
        self.stamp('poll2')
        so = ['0', f's{sO1}', f's{sO2}', f's{sO3}']
        for i in range(4):
            a(f'buffer_load_dwordx4 v[{72+4*i}:{75+4*i}], v10, {S(SRD_WS)}, {so[i]} offen sc1')
        for i in range(4):
            a(f's_waitcnt vmcnt({3-i})')
            a(f'ds_write_b128 v{240+i}, v[{72+4*i}:{75+4*i}]')
        a('s_waitcnt lgkmcnt(0)\ns_barrier')
        self.stamp('z staged')
        for e in range(4):
            a(f'ds_read_b128 v[{88+4*e}:{91+4*e}], v14 offset:{128*e}')
        a(f's_cmp_eq_u32 s{sPART}, 0\ns_cbranch_scc1 L_P3A')
        ZF = 140
        for e in range(4):
            a(f's_waitcnt lgkmcnt({3-e})')
            for q in range(4):
                src = 88 + 4 * e + q
                a(f'v_lshlrev_b32 v{ZF+4*(2*q)+e}, 16, v{src}\nv_and_b32 v{ZF+4*(2*q+1)+e}, s{sHI}, v{src}')
        for r in range(8):
            for h in range(2):
                d = ZF + 4 * r + 2 * h; s = QF + 4 * r + 2 * h
                a(f'v_pk_mul_f32 v[{d}:{d+1}], v[{d}:{d+1}], v[{s}:{s+1}]')
        for r in range(8):
            a(f'v_cvt_pk_bf16_f32 v{176+2*r}, v{ZF+4*r}, v{ZF+4*r+1}\nv_cvt_pk_bf16_f32 v{177+2*r}, v{ZF+4*r+2}, v{ZF+4*r+3}')
            self.outstore(r)
        a('s_branch L_P3E')
        a.label('L_P3A')
        a('s_waitcnt lgkmcnt(0)')
        for r in range(8):
            sel = sSELHI if (r & 1) else sSELLO
            q = r >> 1
            a(f'v_perm_b32 v{176+2*r}, v{88+4+q}, v{88+q}, s{sel}')
            a(f'v_perm_b32 v{177+2*r}, v{88+12+q}, v{88+8+q}, s{sel}')
            self.outstore(r)
        a.label('L_P3E')

    def outstore(self, r):
        b = 'v12' if r < 4 else 'v13'
        k = r % 4
        if k == 0: self.a(f'buffer_store_dwordx2 v[{176+2*r}:{177+2*r}], {b}, {S(SRD_OUT)}, 0 offen')
        elif k == 1: self.a(f'buffer_store_dwordx2 v[{176+2*r}:{177+2*r}], {b}, {S(SRD_OUT)}, 0 offen offset:2560')
        else: self.a(f'buffer_store_dwordx2 v[{176+2*r}:{177+2*r}], {b}, {S(SRD_OUT)}, s{sR2 + (k - 2)} offen')

    def dumplds(self):
        a = self.a
        n = self.uid()
        a(f'''
s_waitcnt vmcnt(0) lgkmcnt(0)
s_barrier
s_mul_i32 s3, s2, {LDS_TOTAL}
s_add_u32 s4, s{P['ws']}, s3
s_addc_u32 s5, s{P['ws']+1}, 0
s_add_u32 s4, s4, {16<<20}
s_addc_u32 s5, s5, 0
s_mov_b32 s6, {LDS_TOTAL}
s_mov_b32 s7, 0x20000
v_lshlrev_b32 v6, 4, v0
s_mov_b32 s3, 0
L_dump{n}:
ds_read_b128 v[8:11], v6
s_waitcnt lgkmcnt(0)
buffer_store_dwordx4 v[8:11], v6, s[4:7], 0 offen
s_waitcnt vmcnt(0)
v_add_u32 v6, 5120, v6
s_add_u32 s3, s3, 1
s_cmp_lt_u32 s3, 32
s_cbranch_scc1 L_dump{n}
s_endpgm
''')

    def finish(self):
        a = self.a
        if self.diag:
            self.stamp('out issued')
            a('s_waitcnt vmcnt(0)')
            self.stamp('end')
            a(f'''
s_mul_i32 s3, s2, 5
s_add_u32 s3, s3, s{sW}
s_lshl_b32 s3, s3, 9
s_add_u32 s4, s{P['ws']}, {8<<20}
s_addc_u32 s5, s{P['ws']+1}, 0
s_mov_b32 s6, {1<<20}
s_mov_b32 s7, 0x20000
v_lshlrev_b32 v6, 2, v1
v_add_u32 v6, s3, v6
buffer_store_dword v254, v6, s[4:7], 0 offen
buffer_store_dword v253, v6, s[4:7], 0 offen offset:256
''')
        a.label('L_END')
        a('s_endpgm')
        a.label('L_CODE_END')

    def build(self):
        a = self.a
        self.prologue()
        self.track('B')
        self.phase1_B()
        a('s_branch L_P2')
        a.label('L_A1')
        self.track('A')
        self.phase1_A()
        a.label('L_P2')
        self.track('C')
        self.phase2_end()
        if self.dump == 'p2': self.dumplds()
        self.conv()
        self.phase3()
        self.finish()
        n = a.finalize()
        return a.text(), n

HEADER = open('concat_heads__ssm_conv_s4d__ssm_conv_h3__prompt.s.ref').read().split('; Override launch')[0]

def make(diag=False, **kw):
    g = Gen(diag=diag, **kw)
    body, n = g.build()
    if diag:
        import json
        json.dump(g.names, open('stamps.json', 'w'))
    s = HEADER
    s += '; Override launch geometry by editing the next line (default: block=256,\n'
    s += f'; @launch grid=(256,1,1) block=(320,1,1) lds={LDS_TOTAL}\n'
    s += f'''.amdgcn_target "amdgcn-amd-amdhsa--gfx950"
.text
.globl {NAME}
.p2align 8
.type {NAME},@function
{NAME}:
'''
    s += body
    s += f'''.section .rodata,"a"
.p2align 6
.amdhsa_kernel {NAME}
  .amdhsa_next_free_vgpr 256
  .amdhsa_next_free_sgpr 102
  .amdhsa_accum_offset 256
  .amdhsa_group_segment_fixed_size 0
  .amdhsa_kernarg_size 128
  .amdhsa_user_sgpr_count 2
  .amdhsa_user_sgpr_kernarg_segment_ptr 1
  .amdhsa_system_sgpr_workgroup_id_x 1
.end_amdhsa_kernel
'''
    return s, n

if __name__ == '__main__':
    ap = argparse.ArgumentParser()
    ap.add_argument('--diag', action='store_true')
    ap.add_argument('--bpart', type=int, default=0)
    ap.add_argument('--dump', default=None)
    ap.add_argument('--noprefetch', action='store_true')
    ap.add_argument('-o', default='concat_heads__ssm_conv_s4d__ssm_conv_h3__prompt.s')
    args = ap.parse_args()
    s, n = make(diag=args.diag, bpart=args.bpart, dump=args.dump, prefetch=not args.noprefetch)
    open(args.o, 'w').write(s)
    print('written', args.o, 'nops inserted', n, 'lines', s.count('\n'))
```
